```python
import torch

def _softmax(x, axis=-1):
    return torch.softmax(x, dim=axis)
def _gelu(x):
    return torch.nn.functional.gelu(x, approximate="tanh")
def _silu(x):
    return torch.nn.functional.silu(x)
def _sigmoid(x):
    return torch.sigmoid(x)
def _layernorm(x, axis=-1, eps=1e-5):
    m = x.mean(dim=axis, keepdim=True)
    v = x.var(dim=axis, keepdim=True, unbiased=False)
    return (x - m) / torch.sqrt(v + eps)
def _scatter_add(tgt, idx, src, axis=0):
    return tgt.clone().index_add_(axis, idx, src)
def _segment_sum(src, seg, n):
    out = torch.zeros((n,) + src.shape[1:], dtype=src.dtype)
    return out.index_add_(0, seg, src)
def _pad(x, pw):
    flat = tuple(v for pair in reversed(pw) for v in pair)
    return torch.nn.functional.pad(x, flat)

kernel_name = 'gated_mix__ssm_conv_s4__mha_block__prompt'

def setup_inputs():

    _w = (lambda a: (lambda t: t.to(torch.bfloat16) if t.is_floating_point() else t)(torch.as_tensor(a)))
    def _A_setup():
        B, L, D, N = 1, 2048, 576, 128
        A_re = -(lambda _x: torch.exp(torch.as_tensor(_x)))((lambda *s: torch.randn(*s, dtype=torch.bfloat16) * 6.4)(D, N))
        A_im = torch.pi * (lambda *s: torch.randn(*s, dtype=torch.bfloat16) * 0.1)(D, N)
        B_re = (lambda *s: torch.randn(*s, dtype=torch.bfloat16) * 0.2)(D, N)
        B_im = (lambda *s: torch.randn(*s, dtype=torch.bfloat16) * 0.2)(D, N)
        C_re = (lambda *s: torch.randn(*s, dtype=torch.bfloat16) * 0.2)(D, N)
        C_im = (lambda *s: torch.randn(*s, dtype=torch.bfloat16) * 0.2)(D, N)
        log_dt = (lambda *s: torch.randn(*s, dtype=torch.bfloat16) * 0.1)(D) * 0.5 - 4.0
        Dskip = (lambda *s: torch.randn(*s, dtype=torch.bfloat16) * 0.1)(D)
        return {
            "u": _w((lambda *s: torch.randn(*s, dtype=torch.bfloat16) * 0.05)(B, L, D)),
            "A_re": _w(A_re),
            "A_im": _w(A_im),
            "B_re": _w(B_re),
            "B_im": _w(B_im),
            "C_re": _w(C_re),
            "C_im": _w(C_im),
            "log_dt": _w(log_dt),
            "Dskip": _w(Dskip),
        }
    _A_in = _A_setup()

    def _B_setup():
        B, S, D, H = 1, 2048, 576, 32
        return {
            "x": _w((lambda *s: torch.randn(*s, dtype=torch.bfloat16) * 0.05)(B, S, D)),
            "wqkv": _w((lambda *s: torch.randn(*s, dtype=torch.bfloat16) * 0.8)(D, 3 * D)),
            "wo": _w((lambda *s: torch.randn(*s, dtype=torch.bfloat16) * 0.05)(D, D)),
        }
    _B_in = _B_setup()

    return {
        "A_u": _A_in["u"],
        "A_A_re": _A_in["A_re"],
        "A_A_im": _A_in["A_im"],
        "A_B_re": _A_in["B_re"],
        "A_B_im": _A_in["B_im"],
        "A_C_re": _A_in["C_re"],
        "A_C_im": _A_in["C_im"],
        "A_log_dt": _A_in["log_dt"],
        "A_Dskip": _A_in["Dskip"],
        "B_x": _B_in["x"],
        "B_wqkv": _B_in["wqkv"],
        "B_wo": _B_in["wo"],
        "gate_w": _w((lambda *s: torch.randn(*s, dtype=torch.bfloat16) * 0.05)(576) * 16.0),
    }

def reference(A_u, A_A_re, A_A_im, A_B_re, A_B_im, A_C_re, A_C_im, A_log_dt, A_Dskip, B_x, B_wqkv, B_wo, gate_w):
    def _A_ref(u, A_re, A_im, B_re, B_im, C_re, C_im, log_dt, Dskip):
        Bsz, L, D = u.shape
        dt = torch.exp(log_dt)[:, None]
        A = A_re + 1j * A_im
        Bc = B_re + 1j * B_im
        Cc = C_re + 1j * C_im
        logdA = dt * A
        dB = dt * Bc
        l = (lambda x, dt: x.to(dt))(torch.arange(L), A_re.dtype)
        P = torch.exp(logdA[:, :, None] * l[None, None, :])
        K = torch.einsum("dn,dnl,dn->dl", Cc, P, dB).real
        L2 = 2 * L
        Kp = _pad(K, ((0, 0), (0, L)))
        up = (lambda x, *d: x.permute(*d))(u, 0, 2, 1)
        up = _pad(up, ((0, 0), (0, 0), (0, L)))
        Kf = (lambda x, axes=(-2,-1): torch.fft.rfft2(x.float(), dim=axes))(Kp[:, None, :], axes=(-2, -1))
        Uf = (lambda x, axes=(-2,-1): torch.fft.rfft2(x.float(), dim=axes))(up[:, :, None, :], axes=(-2, -1))
        Yf = Uf * Kf[None, :, :, :]
        y = (lambda x, s, axes=(-2,-1): torch.fft.irfft2(x, s=s, dim=axes).to(torch.bfloat16))(Yf, (1, L2), axes=(-2, -1))[:, :, 0, :L]
        y = (lambda x, *d: x.permute(*d))(y, 0, 2, 1) + u * Dskip[None, None, :]
        return y

    def _B_ref(x, wqkv, wo):
        B, S, D = x.shape
        H = 32
        Dh = D // H
        qkv = (lambda x, *d: x.permute(*d))((x @ wqkv).reshape(B, S, 3, H, Dh), 2, 0, 3, 1, 4)
        q, k, v = qkv[0], qkv[1], qkv[2]
        scores = torch.einsum("bhqd,bhkd->bhqk", q, k) * (Dh ** -0.5)
        p = _softmax(scores, axis=-1)
        o = torch.einsum("bhqk,bhkd->bhqd", p, v)
        return (lambda x, *d: x.permute(*d))(o, 0, 2, 1, 3).reshape(B, S, D) @ wo

    x = A_u
    g = _sigmoid((x * gate_w).sum(-1, keepdims=True))
    a = _A_ref(x, A_A_re, A_A_im, A_B_re, A_B_im, A_C_re, A_C_im, A_log_dt, A_Dskip)
    b = _B_ref(x, B_wqkv, B_wo)
    return g * a + (1 - g) * b
```

```python
import re
class Asm:
    def __init__(self):
        self.L = []
    def __call__(self, s):
        for ln in s.split("\n"):
            ln = ln.strip()
            if ln:
                self.L.append(ln if ln.endswith(":") or ln.startswith(".") else "    " + ln)
    def label(self, n): self.L.append(n + ":")
    def c(self, s): self.L.append("    ; " + s)
    def text(self): return "\n".join(self.L) + "\n"

def vr(b, n=1):
    return f"v{b}" if n == 1 else f"v[{b}:{b+n-1}]"
def sr(b, n=1):
    return f"s{b}" if n == 1 else f"s[{b}:{b+n-1}]"

_reg = re.compile(r"(?<![\w.])(-?\|?)([vs])(\d+|\[(\d+):(\d+)\])")
def regs(tok):
    out = set()
    for m in _reg.finditer(tok):
        k = m.group(2)
        if m.group(4) is not None:
            out |= {(k, i) for i in range(int(m.group(4)), int(m.group(5)) + 1)}
        else:
            out.add((k, int(m.group(3))))
    if re.search(r"\bvcc\b", tok): out |= {("s", 106), ("s", 107)}
    if re.search(r"\bexec\b", tok): out |= {("s", 126), ("s", 127)}
    if re.search(r"\bm0\b", tok): out.add(("s", 124))
    return out
TRANS = ("v_exp_", "v_log_", "v_rcp_", "v_rsq_", "v_sqrt_", "v_sin_", "v_cos_")
def passes(op):
    if "32x32x4_2b" in op or "f8f6f4" in op or "32x32x2_f32" in op: return 16
    if "32x32" in op: return 8
    if "16x16" in op: return 4
    return 2
def parse(line):
    s = line.split(";")[0].strip()
    if not s or s.endswith(":") or s.startswith("."): return None
    p = s.split(None, 1)
    op = p[0]; rest = p[1] if len(p) > 1 else ""
    ops = [x.strip() for x in re.split(r",\s*(?![^\[]*\])", rest)] if rest else []
    d = dict(op=op, line=s, W=set(), R=set(), kind="other", ops=ops)
    if op.startswith("v_mfma") or op.startswith("v_smfmac"):
        d["kind"] = "mfma"; d["D"] = regs(ops[0]); d["A"] = regs(ops[1]); d["B"] = regs(ops[2])
        if op.startswith("v_smfmac"):
            d["C"] = d["D"]; d["I"] = regs(ops[3].split()[0])
        else:
            d["C"] = regs(ops[3].split()[0]); d["I"] = set()
        d["W"] = d["D"]; d["R"] = d["A"] | d["B"] | d["C"] | d["I"]; d["p"] = passes(op)
    elif op.startswith("v_"):
        d["kind"] = "valu"
        nd = 1
        if op.startswith(("v_add_co", "v_sub_co", "v_addc_co", "v_subb_co", "v_div_scale", "v_mad_u64")): nd = 2
        if op.startswith("v_permlane") and "swap" in op:
            d["W"] = regs(ops[0]) | regs(ops[1]); d["R"] = set(d["W"])
        else:
            for o in ops[:nd]: d["W"] |= regs(o)
            for o in ops[nd:]: d["R"] |= regs(o.split(" op_sel")[0])
            if op.startswith(("v_fmac", "v_dot2c", "v_writelane", "v_pk_fmac")) or "UNUSED_PRESERVE" in s or "dpp" in op or "row_" in s or "quad_perm" in s:
                d["R"] |= d["W"]
            if op.startswith("v_cmpx"): d["W"] |= {("s", 126), ("s", 127)}
        d["trans"] = op.startswith(TRANS)
        d["dpp"] = ("dpp" in op or "row_" in s or "quad_perm" in s)
    elif op.startswith(("buffer_", "global_")):
        d["kind"] = "vmem"
        allr = set()
        for o in ops: allr |= regs(o)
        if " lds" in s + " " and op.startswith("buffer_load") and re.search(r"\blds\b", s):
            d["R"] = allr | {("s", 124)}; d["dma"] = True
        elif "load" in op:
            d["W"] = regs(ops[0]);
            for o in ops[1:]: d["R"] |= regs(o)
            if "d16" in op: d["R"] |= d["W"]
        else:
            d["R"] = allr
            if op.startswith("buffer_store"): d["data"] = regs(ops[0])
            elif op.startswith("global_store"): d["data"] = regs(ops[1])
            d["wide"] = ("x3" in op or "x4" in op)
    elif op.startswith("ds_"):
        d["kind"] = "ds"
        if "read" in op or "bpermute" in op or "swizzle" in op:
            d["W"] = regs(ops[0])
            for o in ops[1:]: d["R"] |= regs(o)
        else:
            for o in ops: d["R"] |= regs(o)
    elif op.startswith("s_"):
        d["kind"] = "salu"
        if op in ("s_nop", "s_waitcnt", "s_barrier", "s_endpgm", "s_setprio", "s_branch", "s_sleep") or op.startswith(("s_cbranch", "s_cmp", "s_bitcmp")):
            for o in ops: d["R"] |= regs(o)
        else:
            d["W"] = regs(ops[0])
            for o in ops[1:]: d["R"] |= regs(o)
            if "saveexec" in op: d["W"] |= {("s", 126), ("s", 127)}
    return d
def states(d):
    if d["op"] == "s_nop": return int(d["ops"][0], 0) + 1
    return 1
def check(lines, name=""):
    hist = []
    errs = []
    for ln in lines:
        d = parse(ln)
        if d is None: continue
        dist = 0
        for p in reversed(hist):
            need = 0; why = ""
            def req(n, w):
                nonlocal need, why
                if n > need: need, why = n, w
            pv = {r for r in p["W"] if r[0] == "v"}; ps = {r for r in p["W"] if r[0] == "s"}
            if p["kind"] == "valu":
                if d["kind"] == "mfma" and pv & d["R"]: req(2, "VALU->MFMA operand")
                if d["kind"] == "mfma" and ("s", 126) in ps: req(4, "VALU exec->MFMA")
                if d["kind"] == "valu":
                    if p.get("trans") and not d.get("trans") and pv & d["R"]: req(1, "trans->VALU")
                    if d["op"].startswith("v_permlane") and pv & d["R"]: req(2, "VALU->permlane")
                    if d.get("dpp") and pv & d["R"]: req(2, "VALU->DPP")
                    if d["op"].startswith(("v_readlane", "v_readfirstlane")) and pv & d["R"]: req(1, "VALU->readlane")
                    if ps & d["R"]:
                        req(4 if d["op"].startswith(("v_readlane", "v_writelane")) else 2, "VALU sgpr->VALU")
                    if ("SDWA" in p["line"].upper() or "op_sel" in p["line"] and not p["op"].startswith("v_pk")) and pv & d["R"]: req(1, "opsel->VALU")
                if d["kind"] == "vmem" and ps & d["R"]: req(5, "VALU sgpr->VMEM")
                if d["kind"] == "salu" and ps & d["R"]: req(1, "VALU sgpr->SALU (pad)")
            if p["kind"] == "mfma":
                n = {2: (4, 5, 1), 4: (6, 8, 3), 8: (10, 12, 7), 16: (18, 20, 15)}[p["p"]]
                if d["kind"] == "mfma":
                    if p["D"] & (d["A"] | d["B"] | d["I"]): req(n[1], "MFMA D->MFMA A/B")
                    if p["D"] & d["C"]:
                        if p["D"] == d["C"] and p["p"] == d["p"]: req(2 if p["p"] == 2 else 0, "chain")
                        else: req(n[0], "MFMA D->MFMA C overlap")
                    elif p["D"] & d["D"] and not (p["D"] == d["D"] and p["p"] == d["p"]): req(n[0], "MFMA D->MFMA D WAW(pad)")
                elif d["kind"] in ("valu", "vmem", "ds"):
                    if p["D"] & (d["R"] | d["W"]): req(n[1], "MFMA D->VALU/mem")
                    if d["kind"] == "valu" and p["C"] & d["W"]: req(n[2], "MFMA C WAR")
            if p["kind"] == "salu" and ("s", 124) in ps and d.get("dma"): req(1, "M0->DMA")
            if p["kind"] == "vmem" and p.get("wide") and p.get("data", set()) & d["W"]:
                req(2 if d["kind"] == "valu" else 1, "store data WAR")
            if need > dist:
                errs.append(f"{name}: need {need} have {dist} ({why}):\n      {p['line']}\n      {d['line']}")
            dist += states(p)
            if dist >= 21: break
        if d["op"] in ("s_branch", "s_endpgm"): hist = []
        else: hist.append(d)
        if len(hist) > 40: hist = hist[-30:]
    return errs
```

```python
import math
from asmlib import *
from layout import *
LOG2E = math.log2(math.e)
def fhex(x):
    import struct
    return "0x%08x" % struct.unpack("<I", struct.pack("<f", x))[0]
QSCALE = LOG2E / math.sqrt(18.0)
ST = "sc1"

class VM:
    def __init__(self): self.q = []
    def issue(self, tag): self.q.append(tag)
    def wait(self, tag):
        idx = max(i for i, t in enumerate(self.q) if t == tag)
        n = len(self.q) - 1 - idx
        assert n < 64
        return f"s_waitcnt vmcnt({n})"

def cmul(d, x, y):
    return [f"v_pk_mul_f32 {vr(d,2)}, {vr(x,2)}, {vr(y,2)} op_sel:[0,0] op_sel_hi:[0,1]",
            f"v_pk_fma_f32 {vr(d,2)}, {vr(x,2)}, {vr(y,2)}, {vr(d,2)} op_sel:[1,1,0] op_sel_hi:[1,0,1] neg_lo:[1,0,0]"]
def interleave(*ls):
    out = []; ls = [list(l) for l in ls]
    while any(ls):
        for l in ls:
            if l: out.append(l.pop(0))
    return out

def kgen():
    P = 10
    E1, E2, E4, E8, E16, E256, Wc = 40, 42, 44, 46, 48, 50, 52
    PA = 64
    BF = 88
    AF = 120
    ACC = 128
    CV = 144
    DT, WA, RA = 36, 37, 38
    L = []
    a = L.append
    a(f"s_mov_b32 s54, {fhex(LOG2E)}")
    lo = LOG2E - float.fromhex(float(__import__('numpy').float32(LOG2E)).hex())
    a(f"s_mov_b32 s55, {fhex(lo)}")
    a(f"v_mov_b32 v16, s48")
    a(f"v_mul_f32 v17, s54, v16")
    a(f"v_fma_f32 v18, s54, v16, -v17")
    a(f"v_fma_f32 v18, s55, v16, v18")
    a(f"v_exp_f32 v17, v17")
    a(f"v_mul_f32 v18, {fhex(math.log(2.0))}, v18")
    a(f"v_fma_f32 v17, v17, v18, v17")
    a(f"v_cvt_pk_bf16_f32 v17, v17, v17")
    a(f"v_and_b32 v{DT}, 0xffff0000, v17")
    a(f"v_lshlrev_b32 v{WA}, 2, v1")
    a(f"v_add_u32 v{WA}, s50, v{WA}")
    a(f"v_and_b32 v16, 31, v1")
    a(f"v_mul_u32_u24 v16, 272, v16")
    a(f"v_lshrrev_b32 v17, 5, v1")
    a(f"v_lshl_add_u32 v16, v17, 4, v16")
    a(f"v_add_u32 v{RA}, s50, v16")
    cvn = [0]
    def cvt():
        r = CV + cvn[0] % 8; cvn[0] += 1; return r
    for ps in range(2):
        for i in range(6):
            a(f"v_lshlrev_b32 v{16+i}, 16, v{P+i}" if ps == 0 else f"v_and_b32 v{16+i}, 0xffff0000, v{P+i}")
        for i in range(4): a(f"v_mul_f32 v{16+i}, v{DT}, v{16+i}")
        a(f"v_mul_f32 v16, s54, v16")
        a(f"v_mul_f32 v17, 0.15915494, v17")
        L.extend(cmul(Wc, 20, 18))
        for k, (sc, E) in enumerate(((1.0, E1), (8.0, E8), (256.0, E256))):
            t = 22 + 4 * k
            if sc == 1.0:
                a(f"v_fract_f32 v{t+1}, v17"); a(f"v_exp_f32 v{t}, v16")
            else:
                a(f"v_mul_f32 v{t}, {fhex(sc)}, v16"); a(f"v_mul_f32 v{t+1}, {fhex(sc)}, v17")
                a(f"v_fract_f32 v{t+1}, v{t+1}"); a(f"v_exp_f32 v{t}, v{t}")
            a(f"v_cos_f32 v{t+2}, v{t+1}"); a(f"v_sin_f32 v{t+3}, v{t+1}")
        a("s_nop 0")
        for k, E in enumerate((E1, E8, E256)):
            t = 22 + 4 * k
            a(f"v_mul_f32 v{E}, v{t}, v{t+2}"); a(f"v_mul_f32 v{E+1}, v{t}, v{t+3}")
        L.extend(interleave(cmul(E16, E8, E8), cmul(E2, E1, E1)))
        L.extend(cmul(E4, E2, E2))
        if ps == 1: a("s_waitcnt lgkmcnt(0)")
        r = cvt(); a(f"v_mov_b32 v{r}, 0x3f80"); a(f"ds_write_b32 v{WA}, v{r}")
        r = cvt(); a(f"v_cvt_pk_bf16_f32 v{r}, v{E8}, v{E8+1}"); a(f"ds_write_b32 v{WA}, v{r} offset:272")
        r = cvt(); a(f"v_cvt_pk_bf16_f32 v{r}, v{E16}, v{E16+1}"); a(f"ds_write_b32 v{WA}, v{r} offset:{2*272}")
        ev, od = E16, E8
        evn, odn = [54, 56], [58, 60]
        for b in range(3, 32, 2):
            o2 = odn[(b // 2) % 2]; e2 = evn[(b // 2) % 2]
            if b + 1 < 32: L.extend(interleave(cmul(o2, od, E16), cmul(e2, ev, E16)))
            else: L.extend(cmul(o2, od, E16))
            r = cvt(); a(f"v_cvt_pk_bf16_f32 v{r}, v{o2}, v{o2+1}"); a(f"ds_write_b32 v{WA}, v{r} offset:{b*272}")
            if b + 1 < 32:
                r = cvt(); a(f"v_cvt_pk_bf16_f32 v{r}, v{e2}, v{e2+1}"); a(f"ds_write_b32 v{WA}, v{r} offset:{(b+1)*272}")
            od, ev = o2, e2
        a("s_waitcnt lgkmcnt(0)")
        for ks in range(8): a(f"ds_read_b128 {vr(BF+4*ks,4)}, v{RA} offset:{32*ks}")
        def pk(row, x): return f"v_cvt_pk_bf16_f32 v{PA+row}, v{x}, -v{x+1}"
        c1 = [pk(0, Wc)]; cur = Wc
        for al in range(1, 8):
            n = [54, 56][al % 2]; c1 += cmul(n, cur, E1) + [pk(al, n)]; cur = n
        big = {256: 8, 512: 12, 768: 14, 1024: 16, 1280: 17, 1536: 20, 1792: 21, 2048: 18}
        c2 = []; cur = Wc
        for k in range(1, 9):
            n = [58, 60][k % 2]; c2 += cmul(n, cur, E256) + [pk(big[256 * k], n)]; cur = n
            if k == 1:
                c2 += cmul(22, n, E2) + [pk(9, 22)] + cmul(24, n, E4) + [pk(10, 24)] + cmul(26, 24, E2) + [pk(11, 26)]
            if k == 2: c2 += cmul(22, n, E4) + [pk(13, 22)]
            if k == 3: c2 += cmul(24, n, E4) + [pk(15, 24)]
        L.extend(interleave(c2, c1))
        a("s_waitcnt lgkmcnt(0)")
        for row in list(range(19)) + [20, 21]: a(f"ds_write_b32 v{WA}, v{PA+row} offset:{row*272}")
        a("s_waitcnt lgkmcnt(0)")
        a(f"ds_read_b128 {vr(AF,4)}, v{RA}")
        for ks in range(8):
            if ks < 7:
                a(f"ds_read_b128 {vr(AF+4*((ks+1)%2),4)}, v{RA} offset:{32*(ks+1)}")
                a("s_waitcnt lgkmcnt(1)")
            else: a("s_waitcnt lgkmcnt(0)")
            cin = "0" if (ps == 0 and ks == 0) else vr(ACC, 16)
            a(f"v_mfma_f32_32x32x16_bf16 {vr(ACC,16)}, {vr(AF+4*(ks%2),4)}, {vr(BF+4*ks,4)}, {cin}")
    a(f"v_and_b32 v16, 31, v1")
    a(f"v_lshrrev_b32 v17, 5, v1")
    a(f"v_lshlrev_b32 v18, 5, v16")
    a(f"v_lshl_add_u32 v18, v17, 4, v18")
    a(f"v_add_u32 v18, s50, v18")
    a(f"v_sub_u32 v19, 4, v17")
    a(f"v_lshlrev_b32 v19, v19, v16")
    a(f"v_lshl_add_u32 v19, v17, 9, v19")
    a(f"v_add_u32 v19, s50, v19")
    a(f"v_mul_u32_u24 v20, 248, v17")
    a(f"v_add_u32 v20, v19, v20")
    a(f"v_lshlrev_b32 v21, 2, v16")
    a(f"v_lshl_add_u32 v21, v17, 8, v21")
    a(f"v_add_u32 v21, s50, v21")
    a(f"v_lshlrev_b32 v22, 4, v1")
    a(f"v_add_u32 v22, s50, v22")
    a(f"v_lshlrev_b32 v23, 3, v1")
    a(f"v_add_u32 v23, s50, v23")
    a(f"ds_write_b128 v18, {vr(ACC,4)}")
    a(f"ds_write_b64 v19, {vr(ACC+4,2)} offset:1024")
    a(f"ds_write_b64 v20, {vr(ACC+6,2)} offset:1032")
    a(f"ds_write_b32 v21, v{ACC+8} offset:2048")
    a(f"ds_write_b32 v21, v{ACC+9} offset:{2048+128}")
    a(f"ds_write_b32 v21, v{ACC+10} offset:{2048+512}")
    a(f"v_mov_b32 v24, 0")
    a(f"v_writelane_b32 v24, s49, 0")
    a(f"v_lshlrev_b32 v25, 5, v1")
    a(f"v_sub_u32 v25, 2016, v25")
    a(f"v_lshlrev_b32 v26, 4, v1")
    a(f"v_sub_u32 v27, 3056, v26")
    a(f"v_lshlrev_b32 v28, 3, v1")
    a(f"v_sub_u32 v28, 3576, v28")
    a("s_waitcnt lgkmcnt(0)")
    T0, T1, T2, T3 = 40, 46, 50, 54
    a(f"ds_read_b128 {vr(T0,4)}, v22"); a(f"ds_read_b32 v{T0+4}, v22 offset:16")
    for T, off in ((T1, 1024), (T2, 1536), (T3, 2048)):
        a(f"ds_read_b64 {vr(T,2)}, v23 offset:{off}"); a(f"ds_read_b32 v{T+2}, v23 offset:{off+8}")
    for i in range(4): a(f"v_mov_b32 v{100+i}, 0")
    a("s_waitcnt lgkmcnt(0)")
    a(f"v_add_f32 v{T0}, v{T0}, v24")
    def emit(dst, T, pat):
        for i, (x, y) in enumerate(pat): a(f"v_cvt_pk_bf16_f32 v{dst+i}, v{T+x}, v{T+y}")
    A_, B_, C_ = 0, 1, 2
    emit(64, T3, [(C_,C_),(C_,C_),(B_,B_),(B_,B_),(B_,B_),(B_,A_),(A_,A_),(A_,A_)])
    a(f"@buffer_store_dwordx4 v[64:67], v25, s[16:19], s51 offen {ST}")
    a(f"@buffer_store_dwordx4 v[68:71], v25, s[16:19], s51 offen offset:16 {ST}")
    emit(72, T3, [(C_,C_),(C_,C_),(C_,B_),(B_,B_),(B_,B_),(B_,B_),(A_,A_),(A_,A_)])
    a(f"@buffer_store_dwordx4 v[72:75], v25, s[16:19], s52 offen {ST}")
    a(f"@buffer_store_dwordx4 v[76:79], v25, s[16:19], s52 offen offset:16 {ST}")
    emit(80, T2, [(C_,C_),(B_,B_),(B_,A_),(A_,A_)])
    a(f"@buffer_store_dwordx4 v[80:83], v27, s[16:19], s51 offen {ST}")
    emit(84, T2, [(C_,C_),(C_,B_),(B_,B_),(A_,A_)])
    a(f"@buffer_store_dwordx4 v[84:87], v27, s[16:19], s52 offen {ST}")
    emit(88, T1, [(C_,B_),(A_,A_)])
    a(f"@buffer_store_dwordx2 v[88:89], v28, s[16:19], s51 offen {ST}")
    emit(90, T1, [(C_,C_),(B_,A_)])
    a(f"@buffer_store_dwordx2 v[90:91], v28, s[16:19], s52 offen {ST}")
    emit(92, T0, [(3,2),(1,0)])
    a(f"@buffer_store_dwordx2 v[92:93], v28, s[16:19], s51 offen offset:512 {ST}")
    emit(94, T0, [(4,3),(2,1)])
    a(f"@buffer_store_dwordx2 v[94:95], v28, s[16:19], s52 offen offset:512 {ST}")
    a(f"v_cvt_pk_bf16_f32 v96, v{T0}, v100")
    a(f"v_lshlrev_b32 v97, 2, v1")
    a(f"v_readlane_b32 s56, v96, 0")
    a(f"v_add_u32 v97, 4096, v97")
    a(f"v_mov_b32 v98, 0")
    a(f"s_nop 2")
    a(f"v_writelane_b32 v98, s56, 0")
    a(f"!s_mov_b64 exec, 0xffffffff")
    a(f"!@buffer_store_dword v100, v97, s[16:19], s51 offen {ST}")
    a(f"!@buffer_store_dword v98, v97, s[16:19], s52 offen {ST}")
    a(f"!@buffer_store_dwordx4 v[100:103], v26, s[16:19], s53 offen {ST}")
    a(f"s_mov_b64 exec, -1")
    return L

def cost(s):
    s = s.lstrip("!@")
    if s.startswith(("v_exp", "v_sin", "v_cos", "v_mfma")): return 8
    if s.startswith("s_waitcnt"): return 40
    return 4

def gen_loader(a, with_kgen, nseg=7):
    vm = VM()
    def issue(c):
        slot = c % 4
        a(f"s_lshl_b32 s28, s25, 7")
        a(f"s_add_u32 s28, s28, s26")
        a(f"s_mul_i32 s29, s25, {64*3456}")
        a(f"s_add_u32 s29, s29, s27")
        a(f"s_add_u32 m0, s30, {slot*32768}")
        a(f"s_add_u32 s25, s25, 1")
        for j in range(4):
            a(f"buffer_load_dwordx4 v{2+j}, s[8:11], s28 offen offset:{1024*j} lds"); vm.issue(c)
        a(f"s_add_u32 m0, s30, {slot*32768+16384}")
        a(f"s_cmp_eq_u32 s25, 9")
        a(f"s_cselect_b32 s25, 0, s25")
        for j in range(4):
            a(f"buffer_load_dwordx4 v{6+j}, s[12:15], s29 offen offset:{1024*j} lds"); vm.issue(c)
    segs = [[] for _ in range(9)]
    if with_kgen:
        a("v_lshlrev_b32 v16, 2, v1")
        a("s_lshl_b32 s28, s31, 8")
        a("v_add_u32 v16, s28, v16")
        for i in range(6):
            a(f"global_load_dword v{10+i}, v16, s[{32+2*i}:{33+2*i}]"); vm.issue("p")
        a("s_lshr_b32 s28, s31, 1")
        a("s_lshl_b32 s28, s28, 2")
        a("s_load_dword s48, s[44:45], s28")
        a("s_load_dword s49, s[46:47], s28")
        K = kgen()
        tot = sum(cost(x) for x in K); per = tot / nseg
        acc = 0; si = 0; glue = False
        for x in K:
            if acc >= per * (si + 1) and si < nseg - 1 and not glue: si += 1
            glue = x.startswith("!")
            segs[si].append(x.lstrip("!")); acc += cost(x)
    for c in range(4): issue(c)
    if with_kgen:
        a("s_waitcnt lgkmcnt(0)")
        a("s_bitcmp1_b32 s31, 0")
        a("s_cselect_b32 s28, 0, 16")
        a("s_lshl_b32 s48, s48, s28")
        a("s_and_b32 s48, s48, 0xffff0000")
        a("s_lshl_b32 s49, s49, s28")
        a("s_and_b32 s49, s49, 0xffff0000")
        a(f"s_mul_i32 s50, s20, 8704")
        a(f"s_add_u32 s50, s50, {131072 - 4*8704}")
        a(f"s_mul_i32 s51, s31, {KRP}")
        a(f"s_add_u32 s51, s51, {KR}")
        a(f"s_add_u32 s52, s51, {KRC}")
        a(f"s_mul_i32 s53, s31, {UTP}")
        a(f"s_add_u32 s53, s53, {UT}")
    for c in range(9):
        a(vm.wait(c))
        a("s_barrier")
        if c >= 1 and c + 3 <= 8: issue(c + 3)
        for x in segs[c]:
            if x.startswith("@"):
                x = x[1:]; vm.issue("st")
            a(x)
    a("s_endpgm")

def gen_consumer(a, vtype):
    XB, WB, ACC = 32, 48, 64
    def reads(c, ks, buf):
        slot = c % 4; hi = slot >> 1; lo = (slot & 1) * 32768
        for ti in range(2):
            a(f"ds_read_b128 {vr(XB+8*buf+4*ti,4)}, v{2+4*hi+ks} offset:{lo+4096*ti}")
        for ci in range(2):
            for half in range(2):
                a(f"ds_read_b64_tr_b16 {vr(WB+8*buf+4*ci+2*half,2)}, v{10+2*hi+ci} offset:{lo+16384+(16*ks+4*half)*256}")
    a("s_barrier")
    reads(0, 0, 0)
    for s in range(36):
        c, ks = divmod(s, 4); buf = s % 2
        if ks < 3:
            reads(c, ks + 1, 1 - buf); a("s_waitcnt lgkmcnt(6)")
        else:
            a("s_waitcnt lgkmcnt(0)")
            if c < 8:
                a("s_barrier"); reads(c + 1, 0, 1 - buf)
        for ci in range(2):
            for ti in range(2):
                D = vr(ACC + 16 * (2 * ci + ti), 16)
                x = vr(XB + 8 * buf + 4 * ti, 4); w = vr(WB + 8 * buf + 4 * ci, 4)
                A, B = (x, w) if vtype else (w, x)
                a(f"v_mfma_f32_32x32x16_bf16 {D}, {A}, {B}, {'0' if s == 0 else D}")
    if vtype:
        a("s_cmp_eq_u32 s33, 1")
        a("s_cbranch_scc1 K1_END")
    a("s_nop 8")
    t = 128
    for ci in range(2):
        for ti in range(2):
            D = ACC + 16 * (2 * ci + ti)
            if ci == 1 and ti == 1: pass
            if vtype:
                for s_ in range(2):
                    for i in range(4): a(f"v_cvt_pk_bf16_f32 v{t+i}, v{D+8*s_+2*i}, v{D+8*s_+2*i+1}")
                    a(f"buffer_store_dwordx4 {vr(t,4)}, v{16+ci}, s[16:19], 0 offen offset:{(2*ti+s_)*576} {ST}")
                    t += 4
            else:
                for j in range(4):
                    a(f"v_pk_mul_f32 {vr(D+4*j,2)}, {vr(D+4*j,2)}, s[34:35]")
                    a(f"v_pk_mul_f32 {vr(D+4*j+2,2)}, {vr(D+4*j+2,2)}, s[34:35]")
                    a(f"v_cvt_pk_bf16_f32 v{t}, v{D+4*j}, v{D+4*j+1}")
                    a(f"v_cvt_pk_bf16_f32 v{t+1}, v{D+4*j+2}, v{D+4*j+3}")
                    a(f"buffer_store_dwordx2 {vr(t,2)}, v{16+8*ti+4*ci+j}, s[16:19], 0 offen {ST}")
                    t += 2
    a("s_endpgm")

def gen_k1(a):
    a.label("k1_kernel")
    a("""
    s_cmp_ge_u32 s2, 256
    s_cbranch_scc1 K1_END
    s_load_dwordx2 s[8:9], s[0:1], 0
    s_load_dwordx2 s[12:13], s[0:1], 80
    s_load_dwordx2 s[16:17], s[0:1], 120
    s_load_dwordx16 s[32:47], s[0:1], 8
    s_load_dwordx2 s[4:5], s[0:1], 96
    v_lshrrev_b32 v2, 6, v0
    v_and_b32 v1, 63, v0
    s_mov_b32 s10, 2359296
    s_mov_b32 s11, 0x00020000
    v_readfirstlane_b32 s20, v2
    s_mov_b32 s14, 1990656
    s_mov_b32 s15, 0x00020000
    """)
    a(f"s_mov_b32 s18, {WSEND}")
    a("""
    s_mov_b32 s19, 0x00020000
    s_and_b32 s21, s2, 7
    s_lshr_b32 s22, s2, 3
    s_cmp_ge_u32 s22, 28
    s_cbranch_scc1 K1_TR
    s_mul_i32 s28, s22, 37
    s_lshr_b32 s28, s28, 8             ; q7
    s_mul_i32 s29, s28, 7
    s_sub_u32 s29, s22, s29            ; r7
    s_lshr_b32 s23, s21, 1
    s_lshl_b32 s23, s23, 2
    s_add_u32 s23, s23, s28            ; rt
    s_and_b32 s24, s21, 1
    s_mul_i32 s24, s24, 7
    s_add_u32 s24, s24, s29            ; ct
    s_lshl_b32 s25, s28, 1
    s_add_u32 s25, s25, s29
    s_cmp_ge_u32 s25, 9
    s_cselect_b32 s28, 9, 0
    s_sub_u32 s25, s25, s28            ; rot
    s_cmp_lt_u32 s20, 4
    s_cbranch_scc1 K1_CONS
    """)
    a.c("loader: v2..5 x voffsets, v6..9 W voffsets")
    a("""
    s_sub_u32 s28, s20, 4              ; lw
    s_lshl_b32 s30, s28, 12
    s_lshl_b32 s26, s23, 2
    s_add_u32 s26, s26, s28
    s_mul_i32 s26, s26, 32*1152
    s_mul_i32 s27, s28, 16*3456
    s_lshl_b32 s29, s24, 8
    s_add_u32 s27, s27, s29
    v_lshrrev_b32 v10, 3, v1
    v_mul_u32_u24 v10, 1152, v10
    v_and_b32 v11, 7, v1
    v_lshrrev_b32 v12, 4, v1
    v_xor_b32 v11, v11, v12
    v_lshl_add_u32 v2, v11, 4, v10
    v_xor_b32 v11, 4, v11
    v_lshl_add_u32 v3, v11, 4, v10
    """)
    a(f"v_add_u32 v3, {8*1152-1024}, v3")
    a(f"v_add_u32 v4, {16*1152-2048}, v2")
    a(f"v_add_u32 v5, {16*1152-2048}, v3")
    a("""
    v_mul_u32_u24 v10, 3456, v12
    v_lshlrev_b32 v12, 2, v12
    v_and_b32 v11, 15, v1
    v_xor_b32 v11, v11, v12
    v_lshl_add_u32 v6, v11, 4, v10
    """)
    for j in range(1, 4): a(f"v_add_u32 v{6+j}, {j*(4*3456-1024)}, v6")
    a("""
    s_mul_i32 s31, s21, 24
    s_add_u32 s31, s31, s22
    s_mul_i32 s31, s31, 3
    s_add_u32 s31, s31, s28            ; channel
    s_waitcnt lgkmcnt(0)
    s_cmp_ge_u32 s22, 24
    s_cbranch_scc1 K1_LOADP
    s_cmp_eq_u32 s28, 3
    s_cbranch_scc1 K1_LOADP
    """)
    gen_loader(a, True)
    a.label("K1_LOADP")
    gen_loader(a, False)
    a.label("K1_CONS")
    a("""
    s_lshr_b32 s26, s20, 1             ; wm
    s_and_b32 s27, s20, 1              ; wn
    v_and_b32 v14, 31, v1              ; l&31
    v_lshrrev_b32 v15, 5, v1           ; h
    s_lshl_b32 s28, s23, 2
    s_lshl_b32 s29, s26, 1
    s_add_u32 s28, s28, s29
    s_waitcnt lgkmcnt(0)
    """)
    a.c("W frag addresses")
    a("""
    v_bfe_u32 v16, v1, 2, 2            ; r
    v_lshl_add_u32 v17, v15, 3, v16    ; 8h+r
    v_lshlrev_b32 v17, 8, v17
    v_bfe_u32 v18, v1, 4, 1
    v_lshl_add_u32 v17, v18, 5, v17
    v_and_b32 v18, 3, v1
    v_lshl_add_u32 v17, v18, 3, v17
    s_lshl_b32 s29, s27, 1
    v_xor_b32 v16, s29, v16
    v_lshl_add_u32 v10, v16, 6, v17
    v_xor_b32 v16, 1, v16
    v_lshl_add_u32 v11, v16, 6, v17
    v_add_u32 v12, 0x10000, v10
    v_add_u32 v13, 0x10000, v11
    s_cmp_ge_u32 s24, 9
    s_cbranch_scc1 K1_VSET
    """)
    def xaddr(rowreg):
        a(f"s_lshl_b32 s29, s26, 13")
        a(f"v_lshlrev_b32 v16, 7, v{rowreg}")
        a(f"v_add_u32 v16, s29, v16")
        a(f"v_bfe_u32 v17, v{rowreg}, 1, 3")
        a(f"v_xor_b32 v17, v17, v15")
        for ks in range(4):
            a(f"v_xor_b32 v18, {2*ks}, v17")
            a(f"v_lshl_add_u32 v{2+ks}, v18, 4, v16")
            a(f"v_add_u32 v{6+ks}, 0x10000, v{2+ks}")
    xaddr(14)
    a.c("QK store addresses")
    a(f"""
    s_lshl_b32 s29, s24, 5
    s_lshl_b32 s30, s27, 4
    s_add_u32 s29, s29, s30            ; G base
    s_cmp_ge_u32 s29, 144
    s_cselect_b32 s30, 144, 0
    s_cselect_b32 s34, 1.0, {fhex(QSCALE)}
    s_mov_b32 s36, 65536
    s_cmov_b32 s36, {KVH}
    s_mov_b32 s37, 8192
    s_cmov_b32 s37, {KVC}
    s_mov_b32 s38, {QF}
    s_cmov_b32 s38, {KV}
    s_mov_b32 s39, {QXP}
    s_cmov_b32 s39, {KXP}
    s_mov_b32 s35, s34
    s_sub_u32 s29, s29, s30
    s_lshr_b32 s30, s28, 3
    s_mul_i32 s30, s30, s37
    s_add_u32 s38, s38, s30
    s_and_b32 s30, s28, 7
    s_lshl_b32 s30, s30, 10
    s_add_u32 s38, s38, s30
    s_lshl_b32 s30, s28, 8
    s_add_u32 s39, s39, s30
    v_lshlrev_b32 v128, 4, v14
    v_add_u32 v128, s38, v128
    v_lshlrev_b32 v129, 3, v14
    v_add_u32 v129, s39, v129
    v_add_u32 v130, s29, v15           ; G' for (0,0)
    v_mov_b32 v140, 1024
    v_mov_b32 v141, 256
    """)
    for ci in range(2):
        for j in range(4):
            d = 16 + 4 * ci + j
            a(f"""
            v_add_u32 v131, {8*ci+2*j}, v130
            v_mul_u32_u24 v132, 57, v131
            v_lshrrev_b32 v132, 9, v132        ; pair
            v_mul_u32_u24 v133, 9, v132
            v_sub_u32 v133, v131, v133         ; g
            v_cmp_lt_u32 vcc, 4, v133
            v_lshlrev_b32 v134, 1, v132
            v_lshlrev_b32 v137, 14, v132
            v_addc_co_u32 v134, vcc, 0, v134, vcc   ; head
            v_and_b32 v135, 1, v134
            v_mul_u32_u24 v135, 5, v135
            v_sub_u32 v135, v133, v135         ; g'
            v_mul_lo_u32 v134, v134, s36
            v_add_u32 v134, v134, v128
            v_lshrrev_b32 v136, 1, v135
            v_lshl_add_u32 v134, v136, 9, v134
            v_and_b32 v136, 1, v135
            v_lshl_add_u32 v134, v136, 3, v134
            v_cmp_eq_u32 vcc, 4, v133
            v_add_u32 v137, v137, v129
            s_nop 0
            v_cndmask_b32 v{d}, v134, v137, vcc
            v_cndmask_b32 v136, v140, v141, vcc
            v_add_u32 v{d+8}, v{d}, v136
            """)
    gen_consumer(a, False)
    a.label("K1_VSET")
    a("""
    v_and_b32 v19, 19, v14
    v_bfe_u32 v16, v14, 2, 1
    v_lshl_or_b32 v19, v16, 3, v19
    v_bfe_u32 v16, v14, 3, 1
    v_lshl_or_b32 v19, v16, 2, v19
    """)
    xaddr(19)
    a(f"""
    s_sub_u32 s29, s24, 9
    s_lshl_b32 s29, s29, 7
    s_lshl_b32 s30, s27, 6
    s_add_u32 s29, s29, s30
    s_cmp_ge_u32 s29, 576
    s_cselect_b32 s33, 1, 0
    s_lshr_b32 s30, s28, 3
    s_mul_i32 s30, s30, {KVC}
    s_and_b32 s31, s28, 7
    s_mul_i32 s31, s31, 1152
    s_add_u32 s30, s30, s31
    s_add_u32 s30, s30, {KV+8192}
    s_mov_b32 s36, {KVH}
    v_mul_u32_u24 v128, 288, v15
    v_add_u32 v128, s30, v128
    v_add_u32 v129, s29, v14
    """)
    for ci in range(2):
        a(f"""
        v_add_u32 v130, {32*ci}, v129
        v_mul_u32_u24 v131, 3641, v130
        v_lshrrev_b32 v131, 16, v131       ; head
        v_mul_u32_u24 v132, 18, v131
        v_sub_u32 v132, v130, v132         ; dim
        v_mul_lo_u32 v131, v131, s36
        v_lshl_add_u32 v132, v132, 4, v128
        v_add_u32 v{16+ci}, v131, v132
        """)
    gen_consumer(a, True)
    a.label("K1_TR")
    a("""
    s_lshr_b32 s23, s21, 1
    s_lshl_b32 s23, s23, 3
    s_and_b32 s24, s21, 1
    s_lshl_b32 s24, s24, 2
    s_add_u32 s23, s23, s24
    s_add_u32 s23, s23, s22
    s_sub_u32 s23, s23, 28
    s_lshl_b32 s24, s23, 3
    s_add_u32 s24, s24, s20
    s_mul_i32 s25, s24, 9216
    s_mul_i32 s26, s20, 9216
    v_lshlrev_b32 v2, 4, v1
    v_and_b32 v3, 7, v1
    v_lshlrev_b32 v4, 4, v3
    s_waitcnt lgkmcnt(0)
    """)
    for m in range(9):
        if m % 4 == 0:
            a(f"s_add_u32 m0, s26, {1024*m}")
            a(f"s_add_u32 s27, s25, {1024*m}")
        a(f"buffer_load_dwordx4 v2, s[8:11], s27 offen offset:{1024*(m%4)} lds")
    for m in range(9): a(f"global_load_dwordx4 {vr(64+4*m,4)}, v4, s[4:5] offset:{128*m}")
    a(f"""
    v_bfe_u32 v5, v1, 2, 2
    v_mul_u32_u24 v5, 1152, v5
    v_lshrrev_b32 v6, 4, v1
    v_lshl_add_u32 v5, v6, 5, v5
    v_and_b32 v6, 3, v1
    v_lshl_add_u32 v5, v6, 3, v5
    v_add_u32 v5, s26, v5
    v_xor_b32 v6, s20, v3
    v_lshlrev_b32 v6, 4, v6
    v_lshl_add_u32 v6, v1, 7, v6
    v_add_u32 v6, 73728, v6
    v_add_u32 v11, 32768, v6
    v_lshrrev_b32 v7, 3, v1            ; l>>3
    v_mul_u32_u24 v8, 1152, v7
    v_add_u32 v8, v8, v4
    v_add_u32 v8, s26, v8
    s_add_u32 s28, s26, 73728
    v_add_u32 v9, s28, v2
    v_xor_b32 v10, v3, v7
    v_lshlrev_b32 v10, 4, v10
    v_mul_u32_u24 v12, {UTP}, v7
    v_add_u32 v10, v10, v12
    s_mul_i32 s28, s20, {72*UTP}
    s_lshl_b32 s29, s23, 7
    s_add_u32 s28, s28, s29
    s_add_u32 s28, s28, {UT+512}
    s_waitcnt vmcnt(9)
    """)
    for m in range(9):
        a(f"ds_read_b64_tr_b16 {vr(16+4*m,2)}, v5 offset:{128*m}")
        a(f"ds_read_b64_tr_b16 {vr(18+4*m,2)}, v5 offset:{128*m+4*1152}")
        if m == 4 or m == 8:
            a("s_waitcnt lgkmcnt(0)")
            for k in range(0 if m == 4 else 5, m + 1):
                a(f"ds_write_b128 v{6 if k<4 else 11}, {vr(16+4*k,4)} offset:{8192*(k if k<4 else k-4)}")
    for m in range(9): a(f"ds_read_b128 {vr(100+4*m,4)}, v8 offset:{128*m}")
    a("v_mov_b32 v13, 0")
    a("v_mov_b32 v14, 0")
    a("s_waitcnt vmcnt(0) lgkmcnt(0)")
    a("s_barrier")
    for m in range(9): a(f"ds_read_b128 {vr(16+4*m,4)}, v9 offset:{1024*m}")
    for i in range(36): a(f"v_dot2c_f32_bf16 v{13+i%2}, v{100+i}, v{64+i}")
    for m in range(9):
        a(f"s_waitcnt lgkmcnt({8-m})")
        a(f"buffer_store_dwordx4 {vr(16+4*m,4)}, v10, s[16:19], s28 offen {ST}")
        if m < 8: a(f"s_add_u32 s28, s28, {8*UTP}")
    a(f"""
    v_add_f32 v13, v13, v14
    s_nop 1
    v_add_f32_dpp v13, v13, v13 quad_perm:[1,0,3,2] row_mask:0xf bank_mask:0xf
    s_nop 1
    v_add_f32_dpp v13, v13, v13 quad_perm:[2,3,0,1] row_mask:0xf bank_mask:0xf
    s_nop 1
    v_add_f32_dpp v13, v13, v13 row_half_mirror row_mask:0xf bank_mask:0xf
    v_cvt_pk_bf16_f32 v13, v13, v13
    v_and_b32 v13, 0xffff0000, v13
    v_mul_f32 v13, {fhex(-LOG2E)}, v13
    v_exp_f32 v13, v13
    s_nop 0
    v_add_f32 v13, 1.0, v13
    v_rcp_f32 v13, v13
    s_nop 0
    v_cvt_pk_bf16_f32 v13, v13, v13
    v_and_b32 v14, 0xffff0000, v13
    v_sub_f32 v15, 1.0, v14
    v_cvt_pk_bf16_f32 v15, v15, v15
    v_and_b32 v15, 0xffff0000, v15
    v_lshlrev_b32 v12, 3, v7
    s_lshl_b32 s29, s24, 6
    s_add_u32 s29, s29, {GG}
    buffer_store_dwordx2 v[14:15], v12, s[16:19], s29 offen {ST}
    """)
    a.label("K1_END")
    a("s_endpgm")
```

```python
import math
from asmlib import *
from layout import *
from k1 import VM, fhex, ST
BLOCK = 768
CH = 18432
ONES = 8 * CH
LDS = ONES + 9216
NV = 136
O, SA, SB, Q, QX, KX, K0, K1 = 2, 20, 52, 84, 88, 90, 92, 96
V = [100, 104, 108, 112]
IDX, AK, AV, AX, AVS, G1 = 116, 117, 118, 119, 120, 121
T0 = 122
CONVPRIO = 0
ATTPRIO = 0

class Att:
    def __init__(self, a):
        self.a = a; self.kbase = 0; self.vchunk = 0
    def k_off(self, n, extra):
        off = (n // 4) * CH + extra - self.kbase
        assert 0 <= off < 65536, off
        return off
    def bump_k(self, n):
        if (n // 4) * CH + 9216 - self.kbase >= 65536:
            self.a(f"v_add_u32 v{AK}, {3*CH}, v{AK}"); self.a(f"v_add_u32 v{AX}, {3*CH}, v{AX}"); self.kbase += 3 * CH
    def ldk(self, n, t): self.a(f"ds_read_b128 {vr([K0,K1][t],4)}, v{AK} offset:{self.k_off(n, (2*(n%4)+t)*1024)}")
    def ldkx(self, n): self.a(f"ds_read_b32 v{KX}, v{AX} offset:{self.k_off(n, 8192+256*(n%4))}")
    def ldv(self, n, g):
        if n // 4 != self.vchunk:
            assert n // 4 == self.vchunk + 1
            self.a(f"v_add_u32 v{AV}, v{AVS}, v{AV}"); self.vchunk += 1
        self.a(f"ds_read_b128 {vr(V[g],4)}, v{AV} offset:{(4*(n%4)+g)*576}")

def mf2b(d, c="0"): return f"v_mfma_f32_32x32x4_2b_bf16 {vr(d,32)}, {vr(KX,2)}, {vr(QX,2)}, {c}"
def mfqk(d, t): return f"v_mfma_f32_32x32x16_bf16 {vr(d+16*t,16)}, {vr([K0,K1][t],4)}, {vr(Q,4)}, {vr(d+16*t,16)}"
def mfpv(s, g): return f"v_smfmac_f32_32x32x32_bf16 {vr(O,16)}, {vr(V[g],4)}, {vr(s+8*g,8)}, v{IDX}"

def addr_init(a):
    a(f"""
    v_lshlrev_b32 v{AK}, 4, v1
    v_lshlrev_b32 v{AX}, 2, v1
    v_mov_b32 v{AV}, v{T0+5}
    """)

def set_m(a, m):
    a(f"""
    v_mov_b32 v{T0+1}, v{m}
    s_nop 1
    v_permlane32_swap_b32 v{m}, v{T0+1}
    v_max_f32 v{m}, v{m}, v{T0+1}
    v_cvt_pk_bf16_f32 v{T0+1}, -v{m}, -v{m}
    v_and_b32 v{T0+1}, 0xffff0000, v{T0+1}
    v_sub_f32 v{T0+2}, -v{m}, v{T0+1}
    v_cvt_pk_bf16_f32 v{QX+1}, v{T0+1}, v{T0+2}
    """)

def barrier(a, k):
    a(f"s_cbranch_vccnz K2_NB{k}")
    a("s_barrier")
    a.label(f"K2_NB{k}")

def gen_att(a):
    a(f"""
    s_lshl_b32 s26, s23, 3
    s_add_u32 s26, s26, s20            ; tt
    s_lshl_b32 s27, s22, 16
    s_lshl_b32 s28, s26, 10
    s_add_u32 s27, s27, s28
    s_lshr_b32 s28, s22, 1
    s_lshl_b32 s28, s28, 14
    s_lshl_b32 s29, s26, 8
    s_add_u32 s28, s28, s29
    s_and_b32 s30, s22, 1
    s_lshl_b32 s30, s30, 2
    s_add_u32 s28, s28, s30
    s_add_u32 s28, s28, {QXP}
    s_add_u32 s29, s29, {GG+4}
    v_lshlrev_b32 v{AK}, 4, v1
    v_and_b32 v{T0}, 31, v1
    v_lshlrev_b32 v{T0+1}, 3, v{T0}
    s_waitcnt lgkmcnt(0)
    buffer_load_dwordx4 {vr(Q,4)}, v{AK}, s[16:19], s27 offen
    buffer_load_dword v{QX}, v{T0+1}, s[16:19], s28 offen
    buffer_load_dword v{G1}, v{T0+1}, s[16:19], s29 offen
    """)
    if ATTPRIO: a(f"s_setprio {ATTPRIO}")
    a.c("V lane address: dims<18 -> 9216+288h+16dim stride CH ; others -> ones strip")
    a(f"""
    v_lshrrev_b32 v{T0+2}, 5, v1
    v_mul_u32_u24 v{T0+2}, 288, v{T0+2}
    v_lshlrev_b32 v{T0+3}, 4, v{T0}
    v_add_u32 v{T0+3}, 9216, v{T0+3}
    v_subrev_u32 v{T0+4}, 20, v{T0}
    v_cmp_gt_u32 vcc, 8, v{T0+4}
    v_mov_b32 v{T0+4}, {ONES+32}
    v_mov_b32 v{T0+5}, {ONES+64}
    v_cndmask_b32 v{T0+4}, v{T0+4}, v{T0+5}, vcc
    v_cmp_gt_u32 vcc, 18, v{T0}
    v_mov_b32 v{AVS}, {CH}
    v_mov_b32 v{IDX}, 0xdddd
    v_cndmask_b32 v{T0+5}, v{T0+4}, v{T0+3}, vcc
    v_cndmask_b32 v{AVS}, 0, v{AVS}, vcc
    v_add_u32 v{T0+5}, v{T0+5}, v{T0+2}
    v_mov_b32 v{KX+1}, 0x3f803f80
    v_mov_b32 v{QX+1}, 0
    v_lshlrev_b32 v{AX}, 2, v1
    """)
    a.c("ones strip (every wave writes the same 64 pieces)")
    a(f"""
    v_lshrrev_b32 v{T0}, 1, v1
    v_mul_u32_u24 v{T0}, 288, v{T0}
    v_and_b32 v{T0+1}, 1, v1
    v_lshl_add_u32 v{T0}, v{T0+1}, 5, v{T0}
    v_add_u32 v{T0}, {ONES+32}, v{T0}
    v_mov_b32 v{K0}, v{KX+1}
    v_mov_b32 v{K0+1}, v{KX+1}
    v_mov_b32 v{K0+2}, v{KX+1}
    v_mov_b32 v{K0+3}, v{KX+1}
    ds_write_b128 v{T0}, {vr(K0,4)}
    s_mov_b64 vcc, 0
    s_waitcnt vmcnt(0) lgkmcnt(0)
    s_barrier
    """)
    t = Att(a)
    t.ldkx(0); t.ldk(0, 0); t.ldk(0, 1)
    a("s_waitcnt lgkmcnt(2)")
    a(mf2b(SA))
    a("s_nop 15"); a("s_nop 0")
    a("s_waitcnt lgkmcnt(0)")
    a(mfqk(SA, 0)); a(mfqk(SA, 1))
    a("s_nop 10")
    a(f"v_max3_f32 v{T0}, v{SA}, v{SA+1}, v{SA+2}")
    for i in range(3, 31, 2): a(f"v_max3_f32 v{T0}, v{T0}, v{SA+i}, v{SA+i+1}")
    a(f"v_max_f32 v{T0}, v{T0}, v{SA+31}")
    set_m(a, T0)
    a.label("K2_RERUN")
    addr_init(a)
    t = Att(a)
    t.ldkx(0); t.ldk(0, 0); t.ldk(0, 1)
    a("s_waitcnt lgkmcnt(2)")
    a(mf2b(SA))
    t.ldkx(1)
    t.ldv(0, 0); t.ldv(0, 1); t.ldv(0, 2)
    for i in range(16): a(f"v_mov_b32 v{O+i}, 0")
    a("s_waitcnt lgkmcnt(4)")
    a(mfqk(SA, 0)); t.ldk(1, 0)
    a(mfqk(SA, 1)); t.ldk(1, 1)
    a("s_nop 7")
    for n in range(32):
        cur, nxt = (SA, SB) if n % 2 == 0 else (SB, SA)
        def exps(x, y):
            for i in range(x, y): a(f"v_exp_f32 v{cur+i}, v{cur+i}")
        last = n == 31
        pre = n + 2 < 32
        if n == 2: barrier(a, 2)
        if n == 10: barrier(a, 3)
        a("s_waitcnt lgkmcnt(0)")
        exps(0, 2)
        if n > 0: a(mfpv(nxt, 3))
        t.ldv(n, 3)
        if pre: t.bump_k(n + 2)
        exps(2, 6)
        if not last: a(mf2b(nxt))
        if pre: t.ldkx(n + 2)
        exps(6, 13)
        a(mfpv(cur, 0))
        if not last: t.ldv(n + 1, 0)
        exps(13, 18)
        a(mfpv(cur, 1))
        if not last: t.ldv(n + 1, 1)
        exps(18, 22)
        if not last: a(mfqk(nxt, 0))
        if pre: t.ldk(n + 2, 0)
        exps(22, 26)
        a(mfpv(cur, 2))
        if not last: t.ldv(n + 1, 2)
        exps(26, 29)
        if not last: a(mfqk(nxt, 1))
        if pre: t.ldk(n + 2, 1)
        exps(29, 32)
        if n >= 30 and not last: a("s_nop 1")
    a("s_waitcnt lgkmcnt(0)")
    a("s_nop 0")
    a(mfpv(SB, 3))
    a(f"""
    s_mul_i32 s27, s26, 36864
    s_lshl_b32 s28, s22, 10
    s_add_u32 s28, s28, s27
    s_add_u32 s28, s28, {OF}
    s_lshr_b32 s29, s22, 2
    s_lshl_b32 s29, s29, 9
    s_and_b32 s30, s22, 3
    s_lshl_b32 s30, s30, 2
    s_add_u32 s29, s29, s30
    s_add_u32 s29, s29, s27
    s_add_u32 s29, s29, {OF+32768}
    s_mov_b32 s31, {fhex(2.0**64)}
    v_lshlrev_b32 v{AK}, 4, v1
    s_cbranch_vccnz K2_FIN
    v_cmp_nge_f32 vcc, s31, v{O+12}
    s_nop 4
    s_cbranch_vccnz K2_SLOW
    """)
    a.label("K2_FIN")
    a(f"""
    v_rcp_f32 v{T0}, v{O+12}
    s_nop 0
    v_mul_f32 v{T0}, v{T0}, v{G1}
    """)
    for i in range(10): a(f"v_mul_f32 v{O+i}, v{O+i}, v{T0}")
    for i in range(5): a(f"v_cvt_pk_bf16_f32 v{SA+i}, v{O+2*i}, v{O+2*i+1}")
    a(f"""
    buffer_store_dwordx4 {vr(SA,4)}, v{AK}, s[16:19], s28 offen {ST}
    s_mov_b64 exec, 0xffffffff
    buffer_store_dword v{SA+4}, v{AK}, s[16:19], s29 offen {ST}
    s_endpgm
    """)
    a.label("K2_SLOW")
    addr_init(a)
    a(f"v_mov_b32 v{QX+1}, 0")
    a(f"v_mov_b32 v{T0}, 0xff800000")
    a("s_mov_b32 s31, 8")
    a.label("K2_SLOWL")
    for m in range(4):
        a(f"ds_read_b32 v{KX}, v{AX} offset:{8192+256*m}")
        a(f"ds_read_b128 {vr(K0,4)}, v{AK} offset:{2048*m}")
        a(f"ds_read_b128 {vr(K1,4)}, v{AK} offset:{2048*m+1024}")
        a("s_waitcnt lgkmcnt(0)")
        a(mf2b(SA)); a("s_nop 15"); a("s_nop 1")
        a(mfqk(SA, 0)); a(mfqk(SA, 1)); a("s_nop 11")
        for i in range(0, 32, 2): a(f"v_max3_f32 v{T0}, v{T0}, v{SA+i}, v{SA+i+1}")
    a(f"""
    v_add_u32 v{AK}, {CH}, v{AK}
    v_add_u32 v{AX}, {CH}, v{AX}
    s_sub_u32 s31, s31, 1
    s_cmp_lg_u32 s31, 0
    s_cbranch_scc1 K2_SLOWL
    """)
    set_m(a, T0)
    a("s_branch K2_RERUN")

def gen_conv(a):
    ACC, AB, BB, VA, VB = 2, 68, 100, 132, 133
    a(f"""
    s_mul_i32 s26, s21, 72
    s_lshl_b32 s27, s24, 2
    s_add_u32 s26, s26, s27
    s_add_u32 s26, s26, s25            ; channel
    s_mul_i32 s27, s26, {KRP}
    s_add_u32 s27, s27, {KR}
    s_mul_i32 s28, s26, {UTP}
    s_add_u32 s28, s28, {UT}
    s_lshl_b32 s29, s26, 12
    s_add_u32 s29, s29, {AT}
    v_bfe_u32 v2, v1, 3, 1
    v_bfe_u32 v3, v1, 2, 1
    v_and_b32 v4, 3, v1
    v_lshl_add_u32 v3, v3, 2, v4       ; (t0-a)/2
    v_lshlrev_b32 v3, 2, v3            ; 2*(t0-a) bytes
    v_bfe_u32 v4, v1, 4, 1
    v_lshl_add_u32 v3, v4, 9, v3       ; + 512 p
    v_mul_u32_u24 v2, {KRC+4}, v2
    v_add_u32 v3, v3, v2
    v_lshrrev_b32 v5, 5, v1
    v_lshlrev_b32 v5, 4, v5            ; 16 h
    v_sub_u32 v{VA}, {KRC+4096-3552}, v3
    v_add_u32 v{VA}, v{VA}, v5
    v_and_b32 v6, 31, v1
    v_lshl_add_u32 v{VB}, v6, 5, v5
    v_add_u32 v{VB}, 32, v{VB}
    v_and_b32 v6, 15, v1
    v_lshl_add_u32 v134, v6, 5, v5
    v_lshl_add_u32 v134, v4, 11, v134
    v_cvt_f32_u32 v135, v4
    """)
    if CONVPRIO: a(f"s_setprio {CONVPRIO}")
    def loads(j):
        b = j % 2
        for i in range(4):
            a(f"buffer_load_dwordx4 {vr(AB+16*b+4*i,4)}, v{VA}, s[16:19], s27 offen offset:{3552-1024*i-32*j}")
            a(f"buffer_load_dwordx4 {vr(BB+16*b+4*i,4)}, v{VB}, s[16:19], s28 offen offset:{480+1024*i-32*j}")
    loads(0)
    for j in range(16):
        b = j % 2
        if j < 15:
            loads(j + 1); a("s_waitcnt vmcnt(8)")
        else: a("s_waitcnt vmcnt(0)")
        first = set()
        for (i, c) in ((0,0),(0,1),(1,0),(1,1),(0,2),(2,0),(1,2),(2,1),(0,3),(3,0)):
            s = i + c; D = vr(ACC + 16 * s, 16)
            cin = "0" if (j == 0 and s not in first) else D
            first.add(s)
            a(f"v_mfma_f32_32x32x16_bf16 {D}, {vr(AB+16*b+4*i,4)}, {vr(BB+16*b+4*c,4)}, {cin}")
    a("s_nop 11")
    Lr = lambda s, r: ACC + 16 * s + r
    Hr = lambda s, r: ACC + 16 * s + 8 + r
    for r in range(8): a(f"v_permlane16_swap_b32 v{Lr(0,r)}, v{Lr(2,r)}")
    for r in range(8): a(f"v_permlane16_swap_b32 v{Hr(0,r)}, v{Hr(2,r)}")
    for r in range(8): a(f"v_fmac_f32 v{Lr(0,r)}, v{Hr(1,r)}, v135")
    for r in range(8): a(f"v_permlane16_swap_b32 v{Lr(1,r)}, v{Lr(3,r)}")
    for r in range(8): a(f"v_permlane16_swap_b32 v{Hr(1,r)}, v{Hr(3,r)}")
    for r in range(8): a(f"v_add_f32 v{Lr(2,r)}, v{Lr(2,r)}, v{Hr(0,r)}")
    for r in range(8): a(f"v_add_f32 v{Lr(1,r)}, v{Lr(1,r)}, v{Hr(2,r)}")
    for r in range(8): a(f"v_add_f32 v{Lr(3,r)}, v{Lr(3,r)}, v{Hr(1,r)}")
    for k, s in enumerate((0, 2, 1, 3)):
        for i in range(4): a(f"v_cvt_pk_bf16_f32 v{AB+4*k+i}, v{Lr(s,i)}, v{Lr(s,4+i)}")
        a(f"buffer_store_dwordx4 {vr(AB+4*k,4)}, v134, s[16:19], s29 offen offset:{512*k} {ST}")
    a("s_endpgm")

def gen_wo(a):
    a(f"""
    s_sub_u32 s26, s24, 18
    s_lshl_b32 s26, s26, 2
    s_add_u32 s26, s26, s25            ; ks
    s_cmp_ge_u32 s26, 36
    s_cbranch_scc1 K2_END
    s_mul_i32 s27, s26, 18
    s_sub_u32 s28, s26, 32
    s_mul_i32 s28, s28, 144
    s_add_u32 s28, s28, 16
    s_cmp_ge_u32 s26, 32
    s_cselect_b32 s27, s28, s27
    s_cselect_b32 s28, 18, 2           ; A
    s_cselect_b32 s29, 36, 8           ; B
    s_cselect_b32 s30, 72, 4
    s_mul_i32 s27, s27, 1152
    s_mul_i32 s28, s28, 1152
    s_mul_i32 s29, s29, 1152
    s_mul_i32 s30, s30, 1152
    s_mul_i32 s31, s21, 144
    s_add_u32 s40, s27, s31
    s_add_u32 s41, s40, 1152
    s_add_u32 s42, s40, s28
    s_add_u32 s43, s41, s28
    s_add_u32 s44, s40, s29
    s_add_u32 s45, s41, s29
    s_add_u32 s46, s42, s29
    s_add_u32 s47, s43, s29
    s_mul_i32 s31, s21, 36
    s_add_u32 s31, s31, s26
    s_mul_i32 s31, s31, 2304
    s_add_u32 s31, s31, {WOF}
    v_cmp_le_u32 vcc, 24, v1
    v_mov_b32 v3, 0
    s_nop 0
    v_addc_co_u32 v3, vcc, 0, v3, vcc  ; h
    v_mul_u32_u24 v4, 24, v3
    v_sub_u32 v4, v1, v4               ; row
    v_bfe_u32 v5, v4, 2, 1
    v_mul_u32_u24 v5, 12, v5
    v_lshrrev_b32 v6, 3, v4
    v_lshl_add_u32 v5, v6, 2, v5
    v_and_b32 v6, 3, v4
    v_add_u32 v5, v5, v6
    v_mul_lo_u32 v3, v3, s30
    v_lshl_add_u32 v3, v5, 1, v3
    v_lshlrev_b32 v4, 4, v1
    s_mov_b32 exec_hi, 0xffff
    """)
    for t in range(3):
        for e in range(8): a(f"buffer_load_ushort v{8+8*t+e}, v3, s[12:15], s{40+e} offen offset:{48*t}")
    for t in range(3):
        a(f"s_waitcnt vmcnt({8*(2-t)+t})")
        for i in range(4): a(f"v_lshl_or_b32 v{32+4*t+i}, v{8+8*t+2*i+1}, 16, v{8+8*t+2*i}")
        a(f"buffer_store_dwordx4 {vr(32+4*t,4)}, v4, s[16:19], s31 offen offset:{768*t} {ST}")
    a("s_endpgm")

def gen_k2(a):
    a.label("k2_kernel")
    a(f"""
    s_cmp_ge_u32 s2, 256
    s_cbranch_scc1 K2_END
    s_load_dwordx2 s[16:17], s[0:1], 120
    s_load_dwordx2 s[12:13], s[0:1], 88
    v_lshrrev_b32 v2, 6, v0
    v_and_b32 v1, 63, v0
    s_mov_b32 s18, {WSEND}
    s_mov_b32 s19, 0x00020000
    v_readfirstlane_b32 s20, v2
    s_mov_b32 s14, 663552
    s_mov_b32 s15, 0x00020000
    s_and_b32 s21, s2, 7               ; xcd
    s_lshr_b32 s24, s2, 3              ; i
    s_and_b32 s22, s24, 3
    s_lshl_b32 s23, s21, 2
    s_add_u32 s22, s22, s23            ; head
    s_lshr_b32 s23, s24, 2             ; qb
    s_cmp_ge_u32 s20, 8
    s_cbranch_scc1 K2_AUX
    """)
    gen_att(a)
    a.label("K2_AUX")
    a(f"""
    s_sub_u32 s25, s20, 8              ; a
    s_mul_i32 s26, s22, {KVH}
    s_add_u32 s26, s26, {KV}
    s_lshl_b32 s27, s25, 11
    s_add_u32 s32, s26, s27
    s_lshl_b32 s28, s25, 8
    s_add_u32 s33, s26, s28
    s_add_u32 s33, s33, 16384
    s_lshr_b32 s29, s22, 1
    s_lshl_b32 s29, s29, 14
    s_and_b32 s30, s22, 1
    s_lshl_b32 s30, s30, 2
    s_add_u32 s29, s29, s30
    s_lshl_b32 s30, s25, 9
    s_add_u32 s29, s29, s30
    s_add_u32 s34, s29, {KXP}
    s_mov_b32 s35, s23
    v_lshlrev_b32 v2, 4, v1
    v_lshlrev_b32 v3, 2, v1
    v_lshlrev_b32 v4, 3, v1
    s_waitcnt lgkmcnt(0)
    """)
    vm = VM()
    for p in range(8):
        a(f"""
        s_mul_i32 s36, s35, {KVC}
        s_add_u32 s37, s36, s32
        s_add_u32 m0, s27, {p*CH}
        s_lshl_b32 s39, s35, 11
        buffer_load_dwordx4 v2, s[16:19], s37 offen lds
        buffer_load_dwordx4 v2, s[16:19], s37 offen offset:1024 lds
        s_add_u32 m0, s28, {p*CH+8192}
        s_add_u32 s39, s39, s34
        buffer_load_dword v4, s[16:19], s39 offen lds
        s_add_u32 m0, s27, {p*CH+9216}
        s_add_u32 s37, s37, 8192
        buffer_load_dwordx4 v2, s[16:19], s37 offen lds
        buffer_load_dwordx4 v2, s[16:19], s37 offen offset:1024 lds
        s_add_u32 m0, s28, {p*CH+17408}
        s_add_u32 s38, s36, s33
        buffer_load_dword v3, s[16:19], s38 offen lds
        s_add_u32 s35, s35, 1
        s_and_b32 s35, s35, 7
        """)
        for _ in range(6): vm.issue(p)
    a(vm.wait(0)); a("s_barrier")
    a(vm.wait(2)); a("s_barrier")
    a(vm.wait(7)); a("s_barrier")
    a("s_cmp_ge_u32 s24, 18")
    a("s_cbranch_scc1 K2_WO")
    gen_conv(a)
    a.label("K2_WO")
    gen_wo(a)
    a.label("K2_END")
    a("s_endpgm")
```

```python
from asmlib import *
from layout import *
from k1 import ST
BLOCK = 576
LDS = 163840
NV = 96
WOB, ATB, OB = 0, 82944, 92160
OST = ""
def gen_k3(a):
    a.label("k3_kernel")
    a(f"""
    s_cmp_ge_u32 s2, 256
    s_cbranch_scc1 K3_END
    s_load_dwordx2 s[16:17], s[0:1], 120
    s_load_dwordx2 s[12:13], s[0:1], 104
    v_lshrrev_b32 v2, 6, v0
    v_and_b32 v1, 63, v0
    s_mov_b32 s18, {WSEND}
    s_mov_b32 s19, 0x00020000
    v_readfirstlane_b32 s20, v2
    s_mov_b32 s14, 2359296
    s_mov_b32 s15, 0x00020000
    s_and_b32 s21, s2, 7
    s_lshr_b32 s24, s2, 3
    s_and_b32 s22, s24, 7              ; dg
    s_lshr_b32 s25, s24, 3
    s_lshl_b32 s23, s21, 2
    s_add_u32 s23, s23, s25            ; tb
    s_lshl_b32 s25, s25, 1
    s_add_u32 s25, s25, s22
    s_cmp_ge_u32 s25, 9
    s_cselect_b32 s26, 9, 0
    s_sub_u32 s25, s25, s26
    s_and_b32 s26, s20, 1              ; ti
    s_lshr_b32 s27, s20, 1
    s_mul_i32 s28, s22, {36*2304}
    s_lshl_b32 s29, s20, 10
    s_add_u32 s28, s28, s29
    s_add_u32 s28, s28, {WOF}
    s_lshl_b32 s30, s23, 1
    s_add_u32 s30, s30, s26            ; tt
    s_mul_i32 s31, s30, 36864
    s_add_u32 s31, s31, {OF}
    s_lshl_b32 s32, s27, 10
    s_add_u32 s32, s32, s31
    s_mov_b32 s33, 4096
    s_add_u32 s34, s29, {OB}
    s_mov_b32 s35, 8192
    s_mov_b32 s36, s25
    v_lshlrev_b32 v2, 4, v1
    v_mov_b32 v3, v2
    s_cmp_lg_u32 s20, 8
    s_cbranch_scc1 K3_N8
    s_mul_i32 s32, s22, {72*4096}
    s_lshl_b32 s33, s23, 7
    s_add_u32 s32, s32, s33
    s_add_u32 s32, s32, {AT}
    s_mov_b32 s33, 32768
    s_mov_b32 s34, {ATB}
    s_mov_b32 s35, 1024
    s_mov_b32 s36, 0
    v_lshrrev_b32 v4, 3, v1
    v_and_b32 v5, 7, v1
    v_xor_b32 v5, v5, v4
    v_lshlrev_b32 v5, 4, v5
    v_lshl_add_u32 v3, v4, 12, v5
    """)
    a.label("K3_N8")
    a(f"""
    s_add_u32 s37, s25, 8
    s_cmp_ge_u32 s37, 9
    s_cselect_b32 s38, 9, 0
    s_sub_u32 s37, s37, s38
    s_lshl_b32 s37, s37, 12
    s_add_u32 s37, s37, s31
    s_lshl_b32 s38, s30, 8
    s_add_u32 s38, s38, {GG}
    v_and_b32 v6, 31, v1
    v_lshlrev_b32 v7, 3, v6
    s_waitcnt lgkmcnt(0)
    buffer_load_dword v8, v7, s[16:19], s38 offen
    buffer_load_dwordx4 v[12:15], v2, s[16:19], s37 offen offset:3072
    """)
    for p in range(9):
        a(f"""
        s_mul_i32 s39, s25, 9216
        s_add_u32 s39, s39, s28
        s_add_u32 m0, s29, {WOB+9216*p}
        s_mul_i32 s40, s36, s33
        buffer_load_dwordx4 v2, s[16:19], s39 offen lds
        s_mov_b32 m0, s34
        s_add_u32 s40, s40, s32
        """)
        if p == 8:
            a("s_cmp_eq_u32 s27, 3"); a("s_cbranch_scc1 K3_SK")
        a("buffer_load_dwordx4 v3, s[16:19], s40 offen lds")
        if p == 8: a.label("K3_SK")
        else:
            a("""
            s_add_u32 s34, s34, s35
            s_add_u32 s25, s25, 1
            s_cmp_eq_u32 s25, 9
            s_cselect_b32 s25, 0, s25
            s_add_u32 s36, s36, 1
            s_cmp_eq_u32 s36, 9
            s_cselect_b32 s36, 0, s36
            """)
    a("s_cmp_ge_u32 s20, 6")
    a("s_cbranch_scc1 K3_IDLE")
    a(f"""
    v_lshrrev_b32 v9, 5, v1            ; h
    v_subrev_u32 v10, 24, v6
    v_min_u32 v10, v10, v6             ; m' = m>=24 ? m-24 : m
    v_mul_u32_u24 v16, 384, v9
    v_lshl_add_u32 v16, v10, 4, v16
    s_mul_i32 s39, s27, 768
    v_add_u32 v16, s39, v16
    v_add_u32 v17, {18*2304}, v16
    s_lshl_b32 s39, s26, 10
    s_add_u32 s39, s39, {OB}
    v_add_u32 v18, s39, v2
    v_add_u32 v19, {18*2048}, v18
    v_bfe_u32 v20, v10, 2, 1
    v_mul_u32_u24 v20, 12, v20
    v_lshrrev_b32 v21, 3, v10
    v_lshl_add_u32 v20, v21, 2, v20
    v_and_b32 v21, 3, v10
    v_add_u32 v20, v20, v21
    s_mul_i32 s39, s27, 24
    v_add_u32 v20, s39, v20
    s_lshl_b32 s39, s26, 2
    v_add_u32 v21, s39, v9
    v_and_b32 v22, 7, v20
    v_xor_b32 v21, v21, v22
    v_lshlrev_b32 v20, 7, v20
    v_add_u32 v20, {ATB}, v20
    v_lshl_add_u32 v22, v21, 4, v20
    v_xor_b32 v21, 2, v21
    v_lshl_add_u32 v23, v21, 4, v20
    v_mul_u32_u24 v24, 1152, v6
    v_mul_u32_u24 v25, 24, v9
    v_add_u32 v24, v24, v25
    s_mul_i32 s41, s30, {32*1152}
    s_mul_i32 s39, s22, 144
    s_add_u32 s41, s41, s39
    s_mul_i32 s39, s27, 48
    s_add_u32 s41, s41, s39
    v_bfe_u32 v25, v6, 3, 1
    v_xor_b32 v25, v25, v9
    v_lshlrev_b32 v25, 3, v25
    v_lshrrev_b32 v26, 4, v6
    v_lshl_add_u32 v25, v26, 2, v25
    v_bfe_u32 v26, v6, 1, 2
    v_add_u32 v25, v25, v26            ; idx
    v_and_b32 v26, 1, v6
    v_lshlrev_b32 v26, 4, v26
    v_sub_u32 v26, 16, v26
    s_waitcnt vmcnt(18)
    v_lshrrev_b32 v8, v26, v8
    """)
    for r in range(8):
        a(f"v_cmp_eq_u32 vcc, {r}, v25"); a("s_nop 1"); a(f"v_cndmask_b32 v{32+r}, 0, v8, vcc")
    ACC, FA, FB = 40, 56, 72
    def waitn(p): return max(0, 2 * (8 - p) - 1)
    for p in range(9):
        a(f"s_waitcnt vmcnt({waitn(p)})"); a("s_barrier")
        n = 0
        for k in range(4):
            pos = 4 * p + k
            a(f"ds_read_b128 {vr(FA+4*k,4)}, v{16+pos//18} offset:{(pos%18)*2304}")
            if pos < 35: a(f"ds_read_b128 {vr(FB+4*k,4)}, v{18+pos//18} offset:{(pos%18)*2048}")
        if p == 8:
            a(f"ds_read_b128 v[88:91], v22"); a(f"ds_read_b128 v[92:95], v23")
        for k in range(4):
            pos = 4 * p + k
            left = 2 * (3 - k) if p < 8 else (2 * (3 - k) + 1 if k < 3 else 2)
            a(f"s_waitcnt lgkmcnt({left})")
            B = vr(FB + 4 * k, 4) if pos < 35 else "v[12:15]"
            a(f"v_mfma_f32_32x32x16_bf16 {vr(ACC,16)}, {vr(FA+4*k,4)}, {B}, {'0' if pos == 0 else vr(ACC,16)}")
    a("s_waitcnt lgkmcnt(0)")
    a(f"v_mfma_f32_32x32x16_bf16 {vr(ACC,16)}, v[88:91], v[32:35], {vr(ACC,16)}")
    a(f"v_mfma_f32_32x32x16_bf16 {vr(ACC,16)}, v[92:95], v[36:39], {vr(ACC,16)}")
    a("s_nop 11")
    for i in range(6): a(f"v_cvt_pk_bf16_f32 v{FA+i}, v{ACC+2*i}, v{ACC+2*i+1}")
    a(f"buffer_store_dwordx4 {vr(FA,4)}, v24, s[12:15], s41 offen {OST}")
    a(f"buffer_store_dwordx2 {vr(FA+4,2)}, v24, s[12:15], s41 offen offset:16 {OST}")
    a("s_endpgm")
    a.label("K3_IDLE")
    for p in range(9):
        a(f"s_waitcnt vmcnt({waitn(p)})"); a("s_barrier")
    a.label("K3_END")
    a("s_endpgm")
```

```python
QF   = 0x000000
KV   = 0x200000
KVC  = 17408
KVH  = 8 * KVC
QXP  = 0x640000
KXP  = 0x680000
UT   = 0x6C0000
UTP  = 4608
KR   = 0x948000
KRC  = 4224
KRP  = 2 * KRC
AT   = 0xDEC000
OF   = 0x102C000
WOF  = 0x126C000
GG   = 0x130E000
WSEND = 0x1312000
assert KV + 32 * KVH == QXP and UT + 576 * UTP == KR and KR + 576 * KRP == AT
STAMP = 0x1400000
```

```python
import sys
from asmlib import *
import k1
NAME = "gated_mix__ssm_conv_s4__mha_block__prompt"
def desc(name, nv, ns=102):
    return f""".amdhsa_kernel {name}
  .amdhsa_next_free_vgpr {nv}
  .amdhsa_next_free_sgpr {ns}
  .amdhsa_accum_offset {(nv+3)//4*4}
  .amdhsa_group_segment_fixed_size 0
  .amdhsa_kernarg_size 128
  .amdhsa_user_sgpr_count 2
  .amdhsa_user_sgpr_kernarg_segment_ptr 1
  .amdhsa_system_sgpr_workgroup_id_x 1
.end_amdhsa_kernel
"""
def build(kernels, out):
    ref = open(f"cdna_kernels/{NAME}.s.ref").read().split("\n")
    head = [l for l in ref if l.startswith(";") and "@launch" not in l and "Override launch" not in l and "grid=ceil" not in l]
    txt = "\n".join(head) + "\n"
    for (name, fn, grid, block, lds, nv) in kernels:
        txt += f"; @launch kernel={name} grid=({grid},1,1) block=({block},1,1) lds={lds}\n"
    txt += '.amdgcn_target "amdgcn-amd-amdhsa--gfx950"\n.text\n'
    seen = []
    nerr = 0
    for (name, fn, grid, block, lds, nv) in kernels:
        if name in seen: continue
        seen.append(name)
        a = Asm(); fn(a)
        errs = check(a.L, name)
        for e in errs: print("HAZARD", e)
        nerr += len(errs)
        txt += f".globl {name}\n.p2align 8\n.type {name},@function\n" + a.text()
    txt += '.section .rodata,"a"\n'
    seen = []
    for (name, fn, grid, block, lds, nv) in kernels:
        if name in seen: continue
        seen.append(name)
        txt += ".p2align 6\n" + desc(name, nv)
    open(out, "w").write(txt)
    print("wrote", out, len(txt), "bytes; hazards:", nerr)
if __name__ == "__main__":
    K = [("k1_kernel", k1.gen_k1, 256, 512, 157184, 168)]
    try:
        import k2; K.append(("k2_kernel", k2.gen_k2, 256, k2.BLOCK, k2.LDS, k2.NV))
        import k3; K.append(("k3_kernel", k3.gen_k3, 256, k3.BLOCK, k3.LDS, k3.NV))
    except ImportError as e: print("partial build:", e)
    build(K, sys.argv[1] if len(sys.argv) > 1 else f"cdna_kernels/{NAME}.s")
```

```python
import re
class Asm:
    def __init__(self):
        self.L = []
    def __call__(self, s):
        for ln in s.split("\n"):
            ln = ln.strip()
            if ln:
                self.L.append(ln if ln.endswith(":") or ln.startswith(".") else "    " + ln)
    def label(self, n): self.L.append(n + ":")
    def c(self, s): self.L.append("    ; " + s)
    diag = False
    kid = 0
    def stamp(self, k):
        if not Asm.diag: return
        self(f"{Asm.diag} s[{80+2*k}:{81+2*k}]")
        self("s_waitcnt lgkmcnt(0)")
    def end(self):
        if Asm.diag:
            from layout import STAMP
            self("s_waitcnt vmcnt(0)")
            self.stamp(7)
            self("s_mov_b64 exec, -1")
            self(f"s_mov_b32 s18, {STAMP + 0x100000}")
            self("s_lshl_b32 s96, s2, 4")
            self("s_add_u32 s96, s96, s20")
            self("s_lshl_b32 s96, s96, 5")
            self(f"s_add_u32 s96, s96, {STAMP + self.kid * 0x40000}")
            self("s_nop 15")
            self("s_nop 15")
            for k in range(8): self(f"v_mov_b32 v{4+k}, s{80+2*k}")
            self("v_mov_b32 v2, 0")
            self("buffer_store_dwordx4 v[4:7], v2, s[16:19], s96 offen")
            self("buffer_store_dwordx4 v[8:11], v2, s[16:19], s96 offen offset:16")
        self("s_endpgm")
    def begin(self):
        if Asm.diag:
            for k in range(1, 8): self(f"s_mov_b32 s{80+2*k}, 0")
            self.stamp(0)
    def text(self): return "\n".join(self.L) + "\n"

def vr(b, n=1):
    return f"v{b}" if n == 1 else f"v[{b}:{b+n-1}]"
def sr(b, n=1):
    return f"s{b}" if n == 1 else f"s[{b}:{b+n-1}]"

_reg = re.compile(r"(?<![\w.])(-?\|?)([vs])(\d+|\[(\d+):(\d+)\])")
def regs(tok):
    out = set()
    for m in _reg.finditer(tok):
        k = m.group(2)
        if m.group(4) is not None:
            out |= {(k, i) for i in range(int(m.group(4)), int(m.group(5)) + 1)}
        else:
            out.add((k, int(m.group(3))))
    if re.search(r"\bvcc\b", tok): out |= {("s", 106), ("s", 107)}
    if re.search(r"\bexec\b", tok): out |= {("s", 126), ("s", 127)}
    if re.search(r"\bm0\b", tok): out.add(("s", 124))
    return out
TRANS = ("v_exp_", "v_log_", "v_rcp_", "v_rsq_", "v_sqrt_", "v_sin_", "v_cos_")
def passes(op):
    if "32x32x4_2b" in op or "f8f6f4" in op or "32x32x2_f32" in op: return 16
    if "32x32" in op: return 8
    if "16x16" in op: return 4
    return 2
def parse(line):
    s = line.split(";")[0].strip()
    if not s or s.endswith(":") or s.startswith("."): return None
    p = s.split(None, 1)
    op = p[0]; rest = p[1] if len(p) > 1 else ""
    ops = [x.strip() for x in re.split(r",\s*(?![^\[]*\])", rest)] if rest else []
    d = dict(op=op, line=s, W=set(), R=set(), kind="other", ops=ops)
    if op.startswith("v_mfma") or op.startswith("v_smfmac"):
        d["kind"] = "mfma"; d["D"] = regs(ops[0]); d["A"] = regs(ops[1]); d["B"] = regs(ops[2])
        if op.startswith("v_smfmac"):
            d["C"] = d["D"]; d["I"] = regs(ops[3].split()[0])
        else:
            d["C"] = regs(ops[3].split()[0]); d["I"] = set()
        d["W"] = d["D"]; d["R"] = d["A"] | d["B"] | d["C"] | d["I"]; d["p"] = passes(op)
    elif op.startswith("v_"):
        d["kind"] = "valu"
        nd = 1
        if op.startswith(("v_add_co", "v_sub_co", "v_addc_co", "v_subb_co", "v_div_scale", "v_mad_u64")): nd = 2
        if op.startswith("v_permlane") and "swap" in op:
            d["W"] = regs(ops[0]) | regs(ops[1]); d["R"] = set(d["W"])
        else:
            for o in ops[:nd]: d["W"] |= regs(o)
            for o in ops[nd:]: d["R"] |= regs(o.split(" op_sel")[0])
            if op.startswith(("v_fmac", "v_dot2c", "v_writelane", "v_pk_fmac")) or "UNUSED_PRESERVE" in s or "dpp" in op or "row_" in s or "quad_perm" in s:
                d["R"] |= d["W"]
            if op.startswith("v_cmpx"): d["W"] |= {("s", 126), ("s", 127)}
        d["trans"] = op.startswith(TRANS)
        d["dpp"] = ("dpp" in op or "row_" in s or "quad_perm" in s)
    elif op.startswith(("buffer_", "global_")):
        d["kind"] = "vmem"
        allr = set()
        for o in ops: allr |= regs(o)
        if " lds" in s + " " and op.startswith("buffer_load") and re.search(r"\blds\b", s):
            d["R"] = allr | {("s", 124)}; d["dma"] = True
        elif "load" in op:
            d["W"] = regs(ops[0]);
            for o in ops[1:]: d["R"] |= regs(o)
            if "d16" in op: d["R"] |= d["W"]
        else:
            d["R"] = allr
            if op.startswith("buffer_store"): d["data"] = regs(ops[0])
            elif op.startswith("global_store"): d["data"] = regs(ops[1])
            d["wide"] = ("x3" in op or "x4" in op)
    elif op.startswith("ds_"):
        d["kind"] = "ds"
        if "read" in op or "bpermute" in op or "swizzle" in op:
            d["W"] = regs(ops[0])
            for o in ops[1:]: d["R"] |= regs(o)
        else:
            for o in ops: d["R"] |= regs(o)
    elif op.startswith("s_"):
        d["kind"] = "salu"
        if op in ("s_nop", "s_waitcnt", "s_barrier", "s_endpgm", "s_setprio", "s_branch", "s_sleep") or op.startswith(("s_cbranch", "s_cmp", "s_bitcmp")):
            for o in ops: d["R"] |= regs(o)
        else:
            d["W"] = regs(ops[0])
            for o in ops[1:]: d["R"] |= regs(o)
            if "saveexec" in op: d["W"] |= {("s", 126), ("s", 127)}
    return d
def states(d):
    if d["op"] == "s_nop": return int(d["ops"][0], 0) + 1
    return 1
def check(lines, name=""):
    hist = []
    errs = []
    for ln in lines:
        d = parse(ln)
        if d is None: continue
        dist = 0
        for p in reversed(hist):
            need = 0; why = ""
            def req(n, w):
                nonlocal need, why
                if n > need: need, why = n, w
            pv = {r for r in p["W"] if r[0] == "v"}; ps = {r for r in p["W"] if r[0] == "s"}
            if p["kind"] == "valu":
                if d["kind"] == "mfma" and pv & d["R"]: req(2, "VALU->MFMA operand")
                if d["kind"] == "mfma" and ("s", 126) in ps: req(4, "VALU exec->MFMA")
                if d["kind"] == "valu":
                    if p.get("trans") and not d.get("trans") and pv & d["R"]: req(1, "trans->VALU")
                    if d["op"].startswith("v_permlane") and pv & d["R"]: req(2, "VALU->permlane")
                    if d.get("dpp") and pv & d["R"]: req(2, "VALU->DPP")
                    if d["op"].startswith(("v_readlane", "v_readfirstlane")) and pv & d["R"]: req(1, "VALU->readlane")
                    if ps & d["R"]:
                        req(4 if d["op"].startswith(("v_readlane", "v_writelane")) else 2, "VALU sgpr->VALU")
                    if ("SDWA" in p["line"].upper() or "op_sel" in p["line"] and not p["op"].startswith("v_pk")) and pv & d["R"]: req(1, "opsel->VALU")
                if d["kind"] == "vmem" and ps & d["R"]: req(5, "VALU sgpr->VMEM")
                if d["kind"] == "salu" and ps & d["R"]: req(1, "VALU sgpr->SALU (pad)")
            if p["kind"] == "mfma":
                n = {2: (4, 5, 1), 4: (6, 8, 3), 8: (10, 12, 7), 16: (18, 20, 15)}[p["p"]]
                if d["kind"] == "mfma":
                    if p["D"] & (d["A"] | d["B"] | d["I"]): req(n[1], "MFMA D->MFMA A/B")
                    if p["D"] & d["C"]:
                        if p["D"] == d["C"] and p["p"] == d["p"]: req(2 if p["p"] == 2 else 0, "chain")
                        else: req(n[0], "MFMA D->MFMA C overlap")
                    elif p["D"] & d["D"] and not (p["D"] == d["D"] and p["p"] == d["p"]): req(n[0], "MFMA D->MFMA D WAW(pad)")
                elif d["kind"] in ("valu", "vmem", "ds"):
                    if p["D"] & (d["R"] | d["W"]): req(n[1], "MFMA D->VALU/mem")
                    if d["kind"] == "valu" and p["C"] & d["W"]: req(n[2], "MFMA C WAR")
            if p["kind"] == "salu" and ("s", 124) in ps and d.get("dma"): req(1, "M0->DMA")
            if p["kind"] == "vmem" and p.get("wide") and p.get("data", set()) & d["W"]:
                req(2 if d["kind"] == "valu" else 1, "store data WAR")
            if need > dist:
                errs.append(f"{name}: need {need} have {dist} ({why}):\n      {p['line']}\n      {d['line']}")
            dist += states(p)
            if dist >= 21: break
        if d["op"] in ("s_branch", "s_endpgm"): hist = []
        else: hist.append(d)
        if len(hist) > 40: hist = hist[-30:]
    return errs
```

```python
import sys
from asmlib import *
import k1
NAME = "gated_mix__ssm_conv_s4__mha_block__prompt"
def desc(name, nv, ns=102):
    return f""".amdhsa_kernel {name}
  .amdhsa_next_free_vgpr {nv}
  .amdhsa_next_free_sgpr {ns}
  .amdhsa_accum_offset {(nv+3)//4*4}
  .amdhsa_group_segment_fixed_size 0
  .amdhsa_kernarg_size 128
  .amdhsa_user_sgpr_count 2
  .amdhsa_user_sgpr_kernarg_segment_ptr 1
  .amdhsa_system_sgpr_workgroup_id_x 1
.end_amdhsa_kernel
"""
def build(kernels, out):
    ref = open(f"cdna_kernels/{NAME}.s.ref").read().split("\n")
    head = [l for l in ref if l.startswith(";") and "@launch" not in l and "Override launch" not in l and "grid=ceil" not in l]
    txt = "\n".join(head) + "\n"
    for (name, fn, grid, block, lds, nv) in kernels:
        txt += f"; @launch kernel={name} grid=({grid},1,1) block=({block},1,1) lds={lds}\n"
    txt += '.amdgcn_target "amdgcn-amd-amdhsa--gfx950"\n.text\n'
    seen = []
    nerr = 0
    for (name, fn, grid, block, lds, nv) in kernels:
        if name in seen: continue
        seen.append(name)
        a = Asm(); a.kid = len(seen) - 1; fn(a)
        errs = check(a.L, name)
        for e in errs: print("HAZARD", e)
        nerr += len(errs)
        txt += f".globl {name}\n.p2align 8\n.type {name},@function\n" + a.text()
    txt += '.section .rodata,"a"\n'
    seen = []
    for (name, fn, grid, block, lds, nv) in kernels:
        if name in seen: continue
        seen.append(name)
        txt += ".p2align 6\n" + desc(name, nv)
    open(out, "w").write(txt)
    print("wrote", out, len(txt), "bytes; hazards:", nerr)
if __name__ == "__main__":
    K = [("k1_kernel", k1.gen_k1, 256, 512, 157184, 168)]
    try:
        import k2; K.append(("k2_kernel", k2.gen_k2, 256, k2.BLOCK, k2.LDS, k2.NV))
        import k3; K.append(("k3_kernel", k3.gen_k3, 256, k3.BLOCK, k3.LDS, k3.NV))
    except ImportError as e: print("partial build:", e)
    build(K, sys.argv[1] if len(sys.argv) > 1 else f"cdna_kernels/{NAME}.s")
    Asm.diag = "s_memrealtime"
    build(K, "diag.s")
    Asm.diag = "s_memtime"
    build(K, "diagc.s")
```

```python
import math
from asmlib import *
from layout import *
LOG2E = math.log2(math.e)
def fhex(x):
    import struct
    return "0x%08x" % struct.unpack("<I", struct.pack("<f", x))[0]
QSCALE = LOG2E / math.sqrt(18.0)
ST = "sc1"

class VM:
    def __init__(self): self.q = []
    def issue(self, tag): self.q.append(tag)
    def wait(self, tag):
        idx = max(i for i, t in enumerate(self.q) if t == tag)
        n = len(self.q) - 1 - idx
        assert n < 64
        return f"s_waitcnt vmcnt({n})"

def cmul(d, x, y):
    return [f"v_pk_mul_f32 {vr(d,2)}, {vr(x,2)}, {vr(y,2)} op_sel:[0,0] op_sel_hi:[0,1]",
            f"v_pk_fma_f32 {vr(d,2)}, {vr(x,2)}, {vr(y,2)}, {vr(d,2)} op_sel:[1,1,0] op_sel_hi:[1,0,1] neg_lo:[1,0,0]"]
def interleave(*ls):
    out = []; ls = [list(l) for l in ls]
    while any(ls):
        for l in ls:
            if l: out.append(l.pop(0))
    return out

def kgen():
    P = 10
    E1, E2, E4, E8, E16, E256, Wc = 40, 42, 44, 46, 48, 50, 52
    PA = 64
    BF = 88
    AF = 120
    ACC = 128
    CV = 144
    DT, WA, RA = 36, 37, 38
    L = []
    a = L.append
    a(f"s_mov_b32 s54, {fhex(LOG2E)}")
    lo = LOG2E - float.fromhex(float(__import__('numpy').float32(LOG2E)).hex())
    a(f"s_mov_b32 s55, {fhex(lo)}")
    a(f"v_mov_b32 v16, s48")
    a(f"v_mul_f32 v17, s54, v16")
    a(f"v_fma_f32 v18, s54, v16, -v17")
    a(f"v_fma_f32 v18, s55, v16, v18")
    a(f"v_exp_f32 v17, v17")
    a(f"v_mul_f32 v18, {fhex(math.log(2.0))}, v18")
    a(f"v_fma_f32 v17, v17, v18, v17")
    a(f"v_cvt_pk_bf16_f32 v17, v17, v17")
    a(f"v_and_b32 v{DT}, 0xffff0000, v17")
    a(f"v_lshlrev_b32 v{WA}, 2, v1")
    a(f"v_add_u32 v{WA}, s50, v{WA}")
    a(f"v_and_b32 v16, 31, v1")
    a(f"v_mul_u32_u24 v16, 272, v16")
    a(f"v_lshrrev_b32 v17, 5, v1")
    a(f"v_lshl_add_u32 v16, v17, 4, v16")
    a(f"v_add_u32 v{RA}, s50, v16")
    cvn = [0]
    def cvt():
        r = CV + cvn[0] % 8; cvn[0] += 1; return r
    for ps in range(2):
        for i in range(6):
            a(f"v_lshlrev_b32 v{16+i}, 16, v{P+i}" if ps == 0 else f"v_and_b32 v{16+i}, 0xffff0000, v{P+i}")
        for i in range(4): a(f"v_mul_f32 v{16+i}, v{DT}, v{16+i}")
        a(f"v_mul_f32 v16, s54, v16")
        a(f"v_mul_f32 v17, 0.15915494, v17")
        L.extend(cmul(Wc, 20, 18))
        for k, (sc, E) in enumerate(((1.0, E1), (8.0, E8), (256.0, E256))):
            t = 22 + 4 * k
            if sc == 1.0:
                a(f"v_fract_f32 v{t+1}, v17"); a(f"v_exp_f32 v{t}, v16")
            else:
                a(f"v_mul_f32 v{t}, {fhex(sc)}, v16"); a(f"v_mul_f32 v{t+1}, {fhex(sc)}, v17")
                a(f"v_fract_f32 v{t+1}, v{t+1}"); a(f"v_exp_f32 v{t}, v{t}")
            a(f"v_cos_f32 v{t+2}, v{t+1}"); a(f"v_sin_f32 v{t+3}, v{t+1}")
        a("s_nop 0")
        for k, E in enumerate((E1, E8, E256)):
            t = 22 + 4 * k
            a(f"v_mul_f32 v{E}, v{t}, v{t+2}"); a(f"v_mul_f32 v{E+1}, v{t}, v{t+3}")
        L.extend(interleave(cmul(E16, E8, E8), cmul(E2, E1, E1)))
        L.extend(cmul(E4, E2, E2))
        if ps == 1: a("s_waitcnt lgkmcnt(0)")
        r = cvt(); a(f"v_mov_b32 v{r}, 0x3f80"); a(f"ds_write_b32 v{WA}, v{r}")
        r = cvt(); a(f"v_cvt_pk_bf16_f32 v{r}, v{E8}, v{E8+1}"); a(f"ds_write_b32 v{WA}, v{r} offset:272")
        r = cvt(); a(f"v_cvt_pk_bf16_f32 v{r}, v{E16}, v{E16+1}"); a(f"ds_write_b32 v{WA}, v{r} offset:{2*272}")
        ev, od = E16, E8
        evn, odn = [54, 56], [58, 60]
        for b in range(3, 32, 2):
            o2 = odn[(b // 2) % 2]; e2 = evn[(b // 2) % 2]
            if b + 1 < 32: L.extend(interleave(cmul(o2, od, E16), cmul(e2, ev, E16)))
            else: L.extend(cmul(o2, od, E16))
            r = cvt(); a(f"v_cvt_pk_bf16_f32 v{r}, v{o2}, v{o2+1}"); a(f"ds_write_b32 v{WA}, v{r} offset:{b*272}")
            if b + 1 < 32:
                r = cvt(); a(f"v_cvt_pk_bf16_f32 v{r}, v{e2}, v{e2+1}"); a(f"ds_write_b32 v{WA}, v{r} offset:{(b+1)*272}")
            od, ev = o2, e2
        a("s_waitcnt lgkmcnt(0)")
        for ks in range(8): a(f"ds_read_b128 {vr(BF+4*ks,4)}, v{RA} offset:{32*ks}")
        def pk(row, x): return f"v_cvt_pk_bf16_f32 v{PA+row}, v{x}, -v{x+1}"
        c1 = [pk(0, Wc)]; cur = Wc
        for al in range(1, 8):
            n = [54, 56][al % 2]; c1 += cmul(n, cur, E1) + [pk(al, n)]; cur = n
        big = {256: 8, 512: 12, 768: 14, 1024: 16, 1280: 17, 1536: 20, 1792: 21, 2048: 18}
        c2 = []; cur = Wc
        for k in range(1, 9):
            n = [58, 60][k % 2]; c2 += cmul(n, cur, E256) + [pk(big[256 * k], n)]; cur = n
            if k == 1:
                c2 += cmul(22, n, E2) + [pk(9, 22)] + cmul(24, n, E4) + [pk(10, 24)] + cmul(26, 24, E2) + [pk(11, 26)]
            if k == 2: c2 += cmul(22, n, E4) + [pk(13, 22)]
            if k == 3: c2 += cmul(24, n, E4) + [pk(15, 24)]
        L.extend(interleave(c2, c1))
        a("s_waitcnt lgkmcnt(0)")
        for row in list(range(19)) + [20, 21]: a(f"ds_write_b32 v{WA}, v{PA+row} offset:{row*272}")
        a("s_waitcnt lgkmcnt(0)")
        a(f"ds_read_b128 {vr(AF,4)}, v{RA}")
        for ks in range(8):
            if ks < 7:
                a(f"ds_read_b128 {vr(AF+4*((ks+1)%2),4)}, v{RA} offset:{32*(ks+1)}")
                a("s_waitcnt lgkmcnt(1)")
            else: a("s_waitcnt lgkmcnt(0)")
            cin = "0" if (ps == 0 and ks == 0) else vr(ACC, 16)
            a(f"v_mfma_f32_32x32x16_bf16 {vr(ACC,16)}, {vr(AF+4*(ks%2),4)}, {vr(BF+4*ks,4)}, {cin}")
    a(f"v_and_b32 v16, 31, v1")
    a(f"v_lshrrev_b32 v17, 5, v1")
    a(f"v_lshlrev_b32 v18, 5, v16")
    a(f"v_lshl_add_u32 v18, v17, 4, v18")
    a(f"v_add_u32 v18, s50, v18")
    a(f"v_sub_u32 v19, 4, v17")
    a(f"v_lshlrev_b32 v19, v19, v16")
    a(f"v_lshl_add_u32 v19, v17, 9, v19")
    a(f"v_add_u32 v19, s50, v19")
    a(f"v_mul_u32_u24 v20, 248, v17")
    a(f"v_add_u32 v20, v19, v20")
    a(f"v_lshlrev_b32 v21, 2, v16")
    a(f"v_lshl_add_u32 v21, v17, 8, v21")
    a(f"v_add_u32 v21, s50, v21")
    a(f"v_lshlrev_b32 v22, 4, v1")
    a(f"v_add_u32 v22, s50, v22")
    a(f"v_lshlrev_b32 v23, 3, v1")
    a(f"v_add_u32 v23, s50, v23")
    a(f"ds_write_b128 v18, {vr(ACC,4)}")
    a(f"ds_write_b64 v19, {vr(ACC+4,2)} offset:1024")
    a(f"ds_write_b64 v20, {vr(ACC+6,2)} offset:1032")
    a(f"ds_write_b32 v21, v{ACC+8} offset:2048")
    a(f"ds_write_b32 v21, v{ACC+9} offset:{2048+128}")
    a(f"ds_write_b32 v21, v{ACC+10} offset:{2048+512}")
    a(f"v_mov_b32 v24, 0")
    a(f"v_writelane_b32 v24, s49, 0")
    a(f"v_lshlrev_b32 v25, 5, v1")
    a(f"v_sub_u32 v25, 2016, v25")
    a(f"v_lshlrev_b32 v26, 4, v1")
    a(f"v_sub_u32 v27, 3056, v26")
    a(f"v_lshlrev_b32 v28, 3, v1")
    a(f"v_sub_u32 v28, 3576, v28")
    a("s_waitcnt lgkmcnt(0)")
    T0, T1, T2, T3 = 40, 46, 50, 54
    a(f"ds_read_b128 {vr(T0,4)}, v22"); a(f"ds_read_b32 v{T0+4}, v22 offset:16")
    for T, off in ((T1, 1024), (T2, 1536), (T3, 2048)):
        a(f"ds_read_b64 {vr(T,2)}, v23 offset:{off}"); a(f"ds_read_b32 v{T+2}, v23 offset:{off+8}")
    for i in range(4): a(f"v_mov_b32 v{100+i}, 0")
    a("s_waitcnt lgkmcnt(0)")
    a(f"v_add_f32 v{T0}, v{T0}, v24")
    def emit(dst, T, pat):
        for i, (x, y) in enumerate(pat): a(f"v_cvt_pk_bf16_f32 v{dst+i}, v{T+x}, v{T+y}")
    A_, B_, C_ = 0, 1, 2
    emit(64, T3, [(C_,C_),(C_,C_),(B_,B_),(B_,B_),(B_,B_),(B_,A_),(A_,A_),(A_,A_)])
    a(f"@buffer_store_dwordx4 v[64:67], v25, s[16:19], s51 offen {ST}")
    a(f"@buffer_store_dwordx4 v[68:71], v25, s[16:19], s51 offen offset:16 {ST}")
    emit(72, T3, [(C_,C_),(C_,C_),(C_,B_),(B_,B_),(B_,B_),(B_,B_),(A_,A_),(A_,A_)])
    a(f"@buffer_store_dwordx4 v[72:75], v25, s[16:19], s52 offen {ST}")
    a(f"@buffer_store_dwordx4 v[76:79], v25, s[16:19], s52 offen offset:16 {ST}")
    emit(80, T2, [(C_,C_),(B_,B_),(B_,A_),(A_,A_)])
    a(f"@buffer_store_dwordx4 v[80:83], v27, s[16:19], s51 offen {ST}")
    emit(84, T2, [(C_,C_),(C_,B_),(B_,B_),(A_,A_)])
    a(f"@buffer_store_dwordx4 v[84:87], v27, s[16:19], s52 offen {ST}")
    emit(88, T1, [(C_,B_),(A_,A_)])
    a(f"@buffer_store_dwordx2 v[88:89], v28, s[16:19], s51 offen {ST}")
    emit(90, T1, [(C_,C_),(B_,A_)])
    a(f"@buffer_store_dwordx2 v[90:91], v28, s[16:19], s52 offen {ST}")
    emit(92, T0, [(3,2),(1,0)])
    a(f"@buffer_store_dwordx2 v[92:93], v28, s[16:19], s51 offen offset:512 {ST}")
    emit(94, T0, [(4,3),(2,1)])
    a(f"@buffer_store_dwordx2 v[94:95], v28, s[16:19], s52 offen offset:512 {ST}")
    a(f"v_cvt_pk_bf16_f32 v96, v{T0}, v100")
    a(f"v_lshlrev_b32 v97, 2, v1")
    a(f"v_readlane_b32 s56, v96, 0")
    a(f"v_add_u32 v97, 4096, v97")
    a(f"v_mov_b32 v98, 0")
    a(f"s_nop 2")
    a(f"v_writelane_b32 v98, s56, 0")
    a(f"!s_mov_b64 exec, 0xffffffff")
    a(f"!@buffer_store_dword v100, v97, s[16:19], s51 offen {ST}")
    a(f"!@buffer_store_dword v98, v97, s[16:19], s52 offen {ST}")
    a(f"!@buffer_store_dwordx4 v[100:103], v26, s[16:19], s53 offen {ST}")
    a(f"s_mov_b64 exec, -1")
    return L

def cost(s):
    s = s.lstrip("!@")
    if s.startswith(("v_exp", "v_sin", "v_cos", "v_mfma")): return 8
    if s.startswith("s_waitcnt"): return 40
    return 4

def gen_loader(a, with_kgen, nseg=7):
    vm = VM()
    def issue(c):
        slot = c % 4
        a(f"s_lshl_b32 s28, s25, 7")
        a(f"s_add_u32 s28, s28, s26")
        a(f"s_mul_i32 s29, s25, {64*3456}")
        a(f"s_add_u32 s29, s29, s27")
        a(f"s_add_u32 m0, s30, {slot*32768}")
        a(f"s_add_u32 s25, s25, 1")
        for j in range(4):
            a(f"buffer_load_dwordx4 v{2+j}, s[8:11], s28 offen offset:{1024*j} lds"); vm.issue(c)
        a(f"s_add_u32 m0, s30, {slot*32768+16384}")
        a(f"s_cmp_eq_u32 s25, 9")
        a(f"s_cselect_b32 s25, 0, s25")
        for j in range(4):
            a(f"buffer_load_dwordx4 v{6+j}, s[12:15], s29 offen offset:{1024*j} lds"); vm.issue(c)
    segs = [[] for _ in range(9)]
    if with_kgen:
        a("v_lshlrev_b32 v16, 2, v1")
        a("s_lshl_b32 s28, s31, 8")
        a("v_add_u32 v16, s28, v16")
        for i in range(6):
            a(f"global_load_dword v{10+i}, v16, s[{32+2*i}:{33+2*i}]"); vm.issue("p")
        a("s_lshr_b32 s28, s31, 1")
        a("s_lshl_b32 s28, s28, 2")
        a("s_load_dword s48, s[44:45], s28")
        a("s_load_dword s49, s[46:47], s28")
        K = kgen()
        tot = sum(cost(x) for x in K); per = tot / nseg
        acc = 0; si = 0; glue = False
        for x in K:
            if acc >= per * (si + 1) and si < nseg - 1 and not glue: si += 1
            glue = x.startswith("!")
            segs[si].append(x.lstrip("!")); acc += cost(x)
    for c in range(4): issue(c)
    if with_kgen:
        a("s_waitcnt lgkmcnt(0)")
        a("s_bitcmp1_b32 s31, 0")
        a("s_cselect_b32 s28, 0, 16")
        a("s_lshl_b32 s48, s48, s28")
        a("s_and_b32 s48, s48, 0xffff0000")
        a("s_lshl_b32 s49, s49, s28")
        a("s_and_b32 s49, s49, 0xffff0000")
        a(f"s_mul_i32 s50, s20, 8704")
        a(f"s_add_u32 s50, s50, {131072 - 4*8704}")
        a(f"s_mul_i32 s51, s31, {KRP}")
        a(f"s_add_u32 s51, s51, {KR}")
        a(f"s_add_u32 s52, s51, {KRC}")
        a(f"s_mul_i32 s53, s31, {UTP}")
        a(f"s_add_u32 s53, s53, {UT}")
    for c in range(9):
        a(vm.wait(c))
        a("s_barrier")
        if c >= 1 and c + 3 <= 8: issue(c + 3)
        for x in segs[c]:
            if x.startswith("@"):
                x = x[1:]; vm.issue("st")
            a(x)
        if c in (0, 4, 8): a.stamp(1 + c // 4)
    a.end()

def gen_consumer(a, vtype):
    XB, WB, ACC = 32, 48, 64
    def reads(c, ks, buf):
        slot = c % 4; hi = slot >> 1; lo = (slot & 1) * 32768
        for ti in range(2):
            a(f"ds_read_b128 {vr(XB+8*buf+4*ti,4)}, v{2+4*hi+ks} offset:{lo+4096*ti}")
        for ci in range(2):
            for half in range(2):
                a(f"ds_read_b64_tr_b16 {vr(WB+8*buf+4*ci+2*half,2)}, v{10+2*hi+ci} offset:{lo+16384+(16*ks+4*half)*256}")
    a.stamp(1)
    a("s_barrier")
    a.stamp(2)
    reads(0, 0, 0)
    for s in range(36):
        c, ks = divmod(s, 4); buf = s % 2
        if ks < 3:
            reads(c, ks + 1, 1 - buf); a("s_waitcnt lgkmcnt(6)")
        else:
            a("s_waitcnt lgkmcnt(0)")
            if c < 8:
                a("s_barrier")
                if c in (1, 4): a.stamp(3 if c == 1 else 4)
                reads(c + 1, 0, 1 - buf)
        for ci in range(2):
            for ti in range(2):
                D = vr(ACC + 16 * (2 * ci + ti), 16)
                x = vr(XB + 8 * buf + 4 * ti, 4); w = vr(WB + 8 * buf + 4 * ci, 4)
                A, B = (x, w) if vtype else (w, x)
                a(f"v_mfma_f32_32x32x16_bf16 {D}, {A}, {B}, {'0' if s == 0 else D}")
    if vtype:
        a("s_cmp_eq_u32 s33, 1")
        a("s_cbranch_scc1 K1_END")
    a("s_nop 8")
    a.stamp(5)
    t = 128
    for ci in range(2):
        for ti in range(2):
            D = ACC + 16 * (2 * ci + ti)
            if ci == 1 and ti == 1: pass
            if vtype:
                for s_ in range(2):
                    for i in range(4): a(f"v_cvt_pk_bf16_f32 v{t+i}, v{D+8*s_+2*i}, v{D+8*s_+2*i+1}")
                    a(f"buffer_store_dwordx4 {vr(t,4)}, v{16+ci}, s[16:19], 0 offen offset:{(2*ti+s_)*576} {ST}")
                    t += 4
            else:
                for j in range(4):
                    a(f"v_pk_mul_f32 {vr(D+4*j,2)}, {vr(D+4*j,2)}, s[34:35]")
                    a(f"v_pk_mul_f32 {vr(D+4*j+2,2)}, {vr(D+4*j+2,2)}, s[34:35]")
                    a(f"v_cvt_pk_bf16_f32 v{t}, v{D+4*j}, v{D+4*j+1}")
                    a(f"v_cvt_pk_bf16_f32 v{t+1}, v{D+4*j+2}, v{D+4*j+3}")
                    a(f"buffer_store_dwordx2 {vr(t,2)}, v{16+8*ti+4*ci+j}, s[16:19], 0 offen {ST}")
                    t += 2
    a.stamp(6)
    a.end()

def gen_k1(a):
    a.label("k1_kernel")
    a("""
    s_cmp_ge_u32 s2, 256
    s_cbranch_scc1 K1_END
    """)
    a.begin()
    a("""
    s_load_dwordx2 s[8:9], s[0:1], 0
    s_load_dwordx2 s[12:13], s[0:1], 80
    s_load_dwordx2 s[16:17], s[0:1], 120
    s_load_dwordx16 s[32:47], s[0:1], 8
    s_load_dwordx2 s[4:5], s[0:1], 96
    v_lshrrev_b32 v2, 6, v0
    v_and_b32 v1, 63, v0
    s_mov_b32 s10, 2359296
    s_mov_b32 s11, 0x00020000
    v_readfirstlane_b32 s20, v2
    s_mov_b32 s14, 1990656
    s_mov_b32 s15, 0x00020000
    """)
    a(f"s_mov_b32 s18, {WSEND}")
    a("""
    s_mov_b32 s19, 0x00020000
    s_and_b32 s21, s2, 7
    s_lshr_b32 s22, s2, 3
    s_cmp_ge_u32 s22, 28
    s_cbranch_scc1 K1_TR
    s_mul_i32 s28, s22, 37
    s_lshr_b32 s28, s28, 8             ; q7
    s_mul_i32 s29, s28, 7
    s_sub_u32 s29, s22, s29            ; r7
    s_lshr_b32 s23, s21, 1
    s_lshl_b32 s23, s23, 2
    s_add_u32 s23, s23, s28            ; rt
    s_and_b32 s24, s21, 1
    s_mul_i32 s24, s24, 7
    s_add_u32 s24, s24, s29            ; ct
    s_lshl_b32 s25, s28, 1
    s_add_u32 s25, s25, s29
    s_cmp_ge_u32 s25, 9
    s_cselect_b32 s28, 9, 0
    s_sub_u32 s25, s25, s28            ; rot
    s_cmp_lt_u32 s20, 4
    s_cbranch_scc1 K1_CONS
    """)
    a.c("loader: v2..5 x voffsets, v6..9 W voffsets")
    a("""
    s_sub_u32 s28, s20, 4              ; lw
    s_lshl_b32 s30, s28, 12
    s_lshl_b32 s26, s23, 2
    s_add_u32 s26, s26, s28
    s_mul_i32 s26, s26, 32*1152
    s_mul_i32 s27, s28, 16*3456
    s_lshl_b32 s29, s24, 8
    s_add_u32 s27, s27, s29
    v_lshrrev_b32 v10, 3, v1
    v_mul_u32_u24 v10, 1152, v10
    v_and_b32 v11, 7, v1
    v_lshrrev_b32 v12, 4, v1
    v_xor_b32 v11, v11, v12
    v_lshl_add_u32 v2, v11, 4, v10
    v_xor_b32 v11, 4, v11
    v_lshl_add_u32 v3, v11, 4, v10
    """)
    a(f"v_add_u32 v3, {8*1152-1024}, v3")
    a(f"v_add_u32 v4, {16*1152-2048}, v2")
    a(f"v_add_u32 v5, {16*1152-2048}, v3")
    a("""
    v_mul_u32_u24 v10, 3456, v12
    v_lshlrev_b32 v12, 2, v12
    v_and_b32 v11, 15, v1
    v_xor_b32 v11, v11, v12
    v_lshl_add_u32 v6, v11, 4, v10
    """)
    for j in range(1, 4): a(f"v_add_u32 v{6+j}, {j*(4*3456-1024)}, v6")
    a("""
    s_mul_i32 s31, s21, 24
    s_add_u32 s31, s31, s22
    s_mul_i32 s31, s31, 3
    s_add_u32 s31, s31, s28            ; channel
    s_waitcnt lgkmcnt(0)
    s_cmp_ge_u32 s22, 24
    s_cbranch_scc1 K1_LOADP
    s_cmp_eq_u32 s28, 3
    s_cbranch_scc1 K1_LOADP
    """)
    gen_loader(a, True)
    a.label("K1_LOADP")
    gen_loader(a, False)
    a.label("K1_CONS")
    a("""
    s_lshr_b32 s26, s20, 1             ; wm
    s_and_b32 s27, s20, 1              ; wn
    v_and_b32 v14, 31, v1              ; l&31
    v_lshrrev_b32 v15, 5, v1           ; h
    s_lshl_b32 s28, s23, 2
    s_lshl_b32 s29, s26, 1
    s_add_u32 s28, s28, s29
    s_waitcnt lgkmcnt(0)
    """)
    a.c("W frag addresses")
    a("""
    v_bfe_u32 v16, v1, 2, 2            ; r
    v_lshl_add_u32 v17, v15, 3, v16    ; 8h+r
    v_lshlrev_b32 v17, 8, v17
    v_bfe_u32 v18, v1, 4, 1
    v_lshl_add_u32 v17, v18, 5, v17
    v_and_b32 v18, 3, v1
    v_lshl_add_u32 v17, v18, 3, v17
    s_lshl_b32 s29, s27, 1
    v_xor_b32 v16, s29, v16
    v_lshl_add_u32 v10, v16, 6, v17
    v_xor_b32 v16, 1, v16
    v_lshl_add_u32 v11, v16, 6, v17
    v_add_u32 v12, 0x10000, v10
    v_add_u32 v13, 0x10000, v11
    s_cmp_ge_u32 s24, 9
    s_cbranch_scc1 K1_VSET
    """)
    def xaddr(rowreg):
        a(f"s_lshl_b32 s29, s26, 13")
        a(f"v_lshlrev_b32 v16, 7, v{rowreg}")
        a(f"v_add_u32 v16, s29, v16")
        a(f"v_bfe_u32 v17, v{rowreg}, 1, 3")
        a(f"v_xor_b32 v17, v17, v15")
        for ks in range(4):
            a(f"v_xor_b32 v18, {2*ks}, v17")
            a(f"v_lshl_add_u32 v{2+ks}, v18, 4, v16")
            a(f"v_add_u32 v{6+ks}, 0x10000, v{2+ks}")
    xaddr(14)
    a.c("QK store addresses")
    a(f"""
    s_lshl_b32 s29, s24, 5
    s_lshl_b32 s30, s27, 4
    s_add_u32 s29, s29, s30            ; G base
    s_cmp_ge_u32 s29, 144
    s_cselect_b32 s30, 144, 0
    s_cselect_b32 s34, 1.0, {fhex(QSCALE)}
    s_mov_b32 s36, 65536
    s_cmov_b32 s36, {KVH}
    s_mov_b32 s37, 8192
    s_cmov_b32 s37, {KVC}
    s_mov_b32 s38, {QF}
    s_cmov_b32 s38, {KV}
    s_mov_b32 s39, {QXP}
    s_cmov_b32 s39, {KXP}
    s_mov_b32 s35, s34
    s_sub_u32 s29, s29, s30
    s_lshr_b32 s30, s28, 3
    s_mul_i32 s30, s30, s37
    s_add_u32 s38, s38, s30
    s_and_b32 s30, s28, 7
    s_lshl_b32 s30, s30, 10
    s_add_u32 s38, s38, s30
    s_lshl_b32 s30, s28, 8
    s_add_u32 s39, s39, s30
    v_lshlrev_b32 v128, 4, v14
    v_add_u32 v128, s38, v128
    v_lshlrev_b32 v129, 3, v14
    v_add_u32 v129, s39, v129
    v_add_u32 v130, s29, v15           ; G' for (0,0)
    v_mov_b32 v140, 1024
    v_mov_b32 v141, 256
    """)
    for ci in range(2):
        for j in range(4):
            d = 16 + 4 * ci + j
            a(f"""
            v_add_u32 v131, {8*ci+2*j}, v130
            v_mul_u32_u24 v132, 57, v131
            v_lshrrev_b32 v132, 9, v132        ; pair
            v_mul_u32_u24 v133, 9, v132
            v_sub_u32 v133, v131, v133         ; g
            v_cmp_lt_u32 vcc, 4, v133
            v_lshlrev_b32 v134, 1, v132
            v_lshlrev_b32 v137, 14, v132
            v_addc_co_u32 v134, vcc, 0, v134, vcc   ; head
            v_and_b32 v135, 1, v134
            v_mul_u32_u24 v135, 5, v135
            v_sub_u32 v135, v133, v135         ; g'
            v_mul_lo_u32 v134, v134, s36
            v_add_u32 v134, v134, v128
            v_lshrrev_b32 v136, 1, v135
            v_lshl_add_u32 v134, v136, 9, v134
            v_and_b32 v136, 1, v135
            v_lshl_add_u32 v134, v136, 3, v134
            v_cmp_eq_u32 vcc, 4, v133
            v_add_u32 v137, v137, v129
            s_nop 0
            v_cndmask_b32 v{d}, v134, v137, vcc
            v_cndmask_b32 v136, v140, v141, vcc
            v_add_u32 v{d+8}, v{d}, v136
            """)
    gen_consumer(a, False)
    a.label("K1_VSET")
    a("""
    v_and_b32 v19, 19, v14
    v_bfe_u32 v16, v14, 2, 1
    v_lshl_or_b32 v19, v16, 3, v19
    v_bfe_u32 v16, v14, 3, 1
    v_lshl_or_b32 v19, v16, 2, v19
    """)
    xaddr(19)
    a(f"""
    s_sub_u32 s29, s24, 9
    s_lshl_b32 s29, s29, 7
    s_lshl_b32 s30, s27, 6
    s_add_u32 s29, s29, s30
    s_cmp_ge_u32 s29, 576
    s_cselect_b32 s33, 1, 0
    s_lshr_b32 s30, s28, 3
    s_mul_i32 s30, s30, {KVC}
    s_and_b32 s31, s28, 7
    s_mul_i32 s31, s31, 1152
    s_add_u32 s30, s30, s31
    s_add_u32 s30, s30, {KV+8192}
    s_mov_b32 s36, {KVH}
    v_mul_u32_u24 v128, 288, v15
    v_add_u32 v128, s30, v128
    v_add_u32 v129, s29, v14
    """)
    for ci in range(2):
        a(f"""
        v_add_u32 v130, {32*ci}, v129
        v_mul_u32_u24 v131, 3641, v130
        v_lshrrev_b32 v131, 16, v131       ; head
        v_mul_u32_u24 v132, 18, v131
        v_sub_u32 v132, v130, v132         ; dim
        v_mul_lo_u32 v131, v131, s36
        v_lshl_add_u32 v132, v132, 4, v128
        v_add_u32 v{16+ci}, v131, v132
        """)
    gen_consumer(a, True)
    a.label("K1_TR")
    a("""
    s_lshr_b32 s23, s21, 1
    s_lshl_b32 s23, s23, 3
    s_and_b32 s24, s21, 1
    s_lshl_b32 s24, s24, 2
    s_add_u32 s23, s23, s24
    s_add_u32 s23, s23, s22
    s_sub_u32 s23, s23, 28
    s_lshl_b32 s24, s23, 3
    s_add_u32 s24, s24, s20
    s_mul_i32 s25, s24, 9216
    s_mul_i32 s26, s20, 9216
    v_lshlrev_b32 v2, 4, v1
    v_and_b32 v3, 7, v1
    v_lshlrev_b32 v4, 4, v3
    s_waitcnt lgkmcnt(0)
    """)
    for m in range(9):
        if m % 4 == 0:
            a(f"s_add_u32 m0, s26, {1024*m}")
            a(f"s_add_u32 s27, s25, {1024*m}")
        a(f"buffer_load_dwordx4 v2, s[8:11], s27 offen offset:{1024*(m%4)} lds")
    for m in range(9): a(f"global_load_dwordx4 {vr(64+4*m,4)}, v4, s[4:5] offset:{128*m}")
    a(f"""
    v_bfe_u32 v5, v1, 2, 2
    v_mul_u32_u24 v5, 1152, v5
    v_lshrrev_b32 v6, 4, v1
    v_lshl_add_u32 v5, v6, 5, v5
    v_and_b32 v6, 3, v1
    v_lshl_add_u32 v5, v6, 3, v5
    v_add_u32 v5, s26, v5
    v_xor_b32 v6, s20, v3
    v_lshlrev_b32 v6, 4, v6
    v_lshl_add_u32 v6, v1, 7, v6
    v_add_u32 v6, 73728, v6
    v_add_u32 v11, 32768, v6
    v_lshrrev_b32 v7, 3, v1            ; l>>3
    v_mul_u32_u24 v8, 1152, v7
    v_add_u32 v8, v8, v4
    v_add_u32 v8, s26, v8
    s_add_u32 s28, s26, 73728
    v_add_u32 v9, s28, v2
    v_xor_b32 v10, v3, v7
    v_lshlrev_b32 v10, 4, v10
    v_mul_u32_u24 v12, {UTP}, v7
    v_add_u32 v10, v10, v12
    s_mul_i32 s28, s20, {72*UTP}
    s_lshl_b32 s29, s23, 7
    s_add_u32 s28, s28, s29
    s_add_u32 s28, s28, {UT+512}
    s_waitcnt vmcnt(9)
    """)
    for m in range(9):
        a(f"ds_read_b64_tr_b16 {vr(16+4*m,2)}, v5 offset:{128*m}")
        a(f"ds_read_b64_tr_b16 {vr(18+4*m,2)}, v5 offset:{128*m+4*1152}")
        if m == 4 or m == 8:
            a("s_waitcnt lgkmcnt(0)")
            for k in range(0 if m == 4 else 5, m + 1):
                a(f"ds_write_b128 v{6 if k<4 else 11}, {vr(16+4*k,4)} offset:{8192*(k if k<4 else k-4)}")
    for m in range(9): a(f"ds_read_b128 {vr(100+4*m,4)}, v8 offset:{128*m}")
    a("v_mov_b32 v13, 0")
    a("v_mov_b32 v14, 0")
    a("s_waitcnt vmcnt(0) lgkmcnt(0)")
    a.stamp(1)
    a("s_barrier")
    for m in range(9): a(f"ds_read_b128 {vr(16+4*m,4)}, v9 offset:{1024*m}")
    for i in range(36): a(f"v_dot2c_f32_bf16 v{13+i%2}, v{100+i}, v{64+i}")
    for m in range(9):
        a(f"s_waitcnt lgkmcnt({8-m})")
        a(f"buffer_store_dwordx4 {vr(16+4*m,4)}, v10, s[16:19], s28 offen {ST}")
        if m < 8: a(f"s_add_u32 s28, s28, {8*UTP}")
    a(f"""
    v_add_f32 v13, v13, v14
    s_nop 1
    v_add_f32_dpp v13, v13, v13 quad_perm:[1,0,3,2] row_mask:0xf bank_mask:0xf
    s_nop 1
    v_add_f32_dpp v13, v13, v13 quad_perm:[2,3,0,1] row_mask:0xf bank_mask:0xf
    s_nop 1
    v_add_f32_dpp v13, v13, v13 row_half_mirror row_mask:0xf bank_mask:0xf
    v_cvt_pk_bf16_f32 v13, v13, v13
    v_and_b32 v13, 0xffff0000, v13
    v_mul_f32 v13, {fhex(-LOG2E)}, v13
    v_exp_f32 v13, v13
    s_nop 0
    v_add_f32 v13, 1.0, v13
    v_rcp_f32 v13, v13
    s_nop 0
    v_cvt_pk_bf16_f32 v13, v13, v13
    v_and_b32 v14, 0xffff0000, v13
    v_sub_f32 v15, 1.0, v14
    v_cvt_pk_bf16_f32 v15, v15, v15
    v_and_b32 v15, 0xffff0000, v15
    v_lshlrev_b32 v12, 3, v7
    s_lshl_b32 s29, s24, 6
    s_add_u32 s29, s29, {GG}
    buffer_store_dwordx2 v[14:15], v12, s[16:19], s29 offen {ST}
    """)
    a.end()
    a.label("K1_END")
    a("s_endpgm")
```

```python
import math
from asmlib import *
from layout import *
from k1 import VM, fhex, ST
BLOCK = 768
CH = 18432
ONES = 8 * CH
LDS = ONES + 9216
NV = 136
O, SA, SB, Q, QX, KX, K0, K1 = 2, 20, 52, 84, 88, 90, 92, 96
V = [100, 104, 108, 112]
IDX, AK, AV, AX, AVS, G1 = 116, 117, 118, 119, 120, 121
T0 = 122
CONVPRIO = 0
ATTPRIO = 0

class Att:
    def __init__(self, a):
        self.a = a; self.kbase = 0; self.vchunk = 0
    def k_off(self, n, extra):
        off = (n // 4) * CH + extra - self.kbase
        assert 0 <= off < 65536, off
        return off
    def bump_k(self, n):
        if (n // 4) * CH + 9216 - self.kbase >= 65536:
            self.a(f"v_add_u32 v{AK}, {3*CH}, v{AK}"); self.a(f"v_add_u32 v{AX}, {3*CH}, v{AX}"); self.kbase += 3 * CH
    def ldk(self, n, t): self.a(f"ds_read_b128 {vr([K0,K1][t],4)}, v{AK} offset:{self.k_off(n, (2*(n%4)+t)*1024)}")
    def ldkx(self, n): self.a(f"ds_read_b32 v{KX}, v{AX} offset:{self.k_off(n, 8192+256*(n%4))}")
    def ldv(self, n, g):
        if n // 4 != self.vchunk:
            assert n // 4 == self.vchunk + 1
            self.a(f"v_add_u32 v{AV}, v{AVS}, v{AV}"); self.vchunk += 1
        self.a(f"ds_read_b128 {vr(V[g],4)}, v{AV} offset:{(4*(n%4)+g)*576}")

def mf2b(d, c="0"): return f"v_mfma_f32_32x32x4_2b_bf16 {vr(d,32)}, {vr(KX,2)}, {vr(QX,2)}, {c}"
def mfqk(d, t): return f"v_mfma_f32_32x32x16_bf16 {vr(d+16*t,16)}, {vr([K0,K1][t],4)}, {vr(Q,4)}, {vr(d+16*t,16)}"
def mfpv(s, g): return f"v_smfmac_f32_32x32x32_bf16 {vr(O,16)}, {vr(V[g],4)}, {vr(s+8*g,8)}, v{IDX}"

def addr_init(a):
    a(f"""
    v_lshlrev_b32 v{AK}, 4, v1
    v_lshlrev_b32 v{AX}, 2, v1
    v_mov_b32 v{AV}, v{T0+5}
    """)

def set_m(a, m):
    a(f"""
    v_mov_b32 v{T0+1}, v{m}
    s_nop 1
    v_permlane32_swap_b32 v{m}, v{T0+1}
    v_max_f32 v{m}, v{m}, v{T0+1}
    v_cvt_pk_bf16_f32 v{T0+1}, -v{m}, -v{m}
    v_and_b32 v{T0+1}, 0xffff0000, v{T0+1}
    v_sub_f32 v{T0+2}, -v{m}, v{T0+1}
    v_cvt_pk_bf16_f32 v{QX+1}, v{T0+1}, v{T0+2}
    """)

def barrier(a, k):
    a(f"s_cbranch_vccnz K2_NB{k}")
    a("s_barrier")
    a.label(f"K2_NB{k}")

def gen_att(a):
    a(f"""
    s_lshl_b32 s26, s23, 3
    s_add_u32 s26, s26, s20            ; tt
    s_lshl_b32 s27, s22, 16
    s_lshl_b32 s28, s26, 10
    s_add_u32 s27, s27, s28
    s_lshr_b32 s28, s22, 1
    s_lshl_b32 s28, s28, 14
    s_lshl_b32 s29, s26, 8
    s_add_u32 s28, s28, s29
    s_and_b32 s30, s22, 1
    s_lshl_b32 s30, s30, 2
    s_add_u32 s28, s28, s30
    s_add_u32 s28, s28, {QXP}
    s_add_u32 s29, s29, {GG+4}
    v_lshlrev_b32 v{AK}, 4, v1
    v_and_b32 v{T0}, 31, v1
    v_lshlrev_b32 v{T0+1}, 3, v{T0}
    s_waitcnt lgkmcnt(0)
    buffer_load_dwordx4 {vr(Q,4)}, v{AK}, s[16:19], s27 offen
    buffer_load_dword v{QX}, v{T0+1}, s[16:19], s28 offen
    buffer_load_dword v{G1}, v{T0+1}, s[16:19], s29 offen
    """)
    if ATTPRIO: a(f"s_setprio {ATTPRIO}")
    a.c("V lane address: dims<18 -> 9216+288h+16dim stride CH ; others -> ones strip")
    a(f"""
    v_lshrrev_b32 v{T0+2}, 5, v1
    v_mul_u32_u24 v{T0+2}, 288, v{T0+2}
    v_lshlrev_b32 v{T0+3}, 4, v{T0}
    v_add_u32 v{T0+3}, 9216, v{T0+3}
    v_subrev_u32 v{T0+4}, 20, v{T0}
    v_cmp_gt_u32 vcc, 8, v{T0+4}
    v_mov_b32 v{T0+4}, {ONES+32}
    v_mov_b32 v{T0+5}, {ONES+64}
    v_cndmask_b32 v{T0+4}, v{T0+4}, v{T0+5}, vcc
    v_cmp_gt_u32 vcc, 18, v{T0}
    v_mov_b32 v{AVS}, {CH}
    v_mov_b32 v{IDX}, 0xdddd
    v_cndmask_b32 v{T0+5}, v{T0+4}, v{T0+3}, vcc
    v_cndmask_b32 v{AVS}, 0, v{AVS}, vcc
    v_add_u32 v{T0+5}, v{T0+5}, v{T0+2}
    v_mov_b32 v{KX+1}, 0x3f803f80
    v_mov_b32 v{QX+1}, 0
    v_lshlrev_b32 v{AX}, 2, v1
    """)
    a.c("ones strip (every wave writes the same 64 pieces)")
    a(f"""
    v_lshrrev_b32 v{T0}, 1, v1
    v_mul_u32_u24 v{T0}, 288, v{T0}
    v_and_b32 v{T0+1}, 1, v1
    v_lshl_add_u32 v{T0}, v{T0+1}, 5, v{T0}
    v_add_u32 v{T0}, {ONES+32}, v{T0}
    v_mov_b32 v{K0}, v{KX+1}
    v_mov_b32 v{K0+1}, v{KX+1}
    v_mov_b32 v{K0+2}, v{KX+1}
    v_mov_b32 v{K0+3}, v{KX+1}
    ds_write_b128 v{T0}, {vr(K0,4)}
    s_mov_b64 vcc, 0
    s_waitcnt vmcnt(0) lgkmcnt(0)
    """)
    a.stamp(1)
    a("s_barrier")
    a.stamp(2)
    t = Att(a)
    t.ldkx(0); t.ldk(0, 0); t.ldk(0, 1)
    a("s_waitcnt lgkmcnt(2)")
    a(mf2b(SA))
    a("s_nop 15"); a("s_nop 0")
    a("s_waitcnt lgkmcnt(0)")
    a(mfqk(SA, 0)); a(mfqk(SA, 1))
    a("s_nop 10")
    a(f"v_max3_f32 v{T0}, v{SA}, v{SA+1}, v{SA+2}")
    for i in range(3, 31, 2): a(f"v_max3_f32 v{T0}, v{T0}, v{SA+i}, v{SA+i+1}")
    a(f"v_max_f32 v{T0}, v{T0}, v{SA+31}")
    set_m(a, T0)
    a.label("K2_RERUN")
    addr_init(a)
    t = Att(a)
    t.ldkx(0); t.ldk(0, 0); t.ldk(0, 1)
    a("s_waitcnt lgkmcnt(2)")
    a(mf2b(SA))
    t.ldkx(1)
    t.ldv(0, 0); t.ldv(0, 1); t.ldv(0, 2)
    for i in range(16): a(f"v_mov_b32 v{O+i}, 0")
    a("s_waitcnt lgkmcnt(4)")
    a(mfqk(SA, 0)); t.ldk(1, 0)
    a(mfqk(SA, 1)); t.ldk(1, 1)
    a("s_nop 7")
    for n in range(32):
        cur, nxt = (SA, SB) if n % 2 == 0 else (SB, SA)
        def exps(x, y):
            for i in range(x, y): a(f"v_exp_f32 v{cur+i}, v{cur+i}")
        last = n == 31
        pre = n + 2 < 32
        if n == 2: barrier(a, 2)
        if n == 10: barrier(a, 3)
        if n in (0, 10, 20): a.stamp(3 + n // 10)
        a("s_waitcnt lgkmcnt(0)")
        exps(0, 2)
        if n > 0: a(mfpv(nxt, 3))
        t.ldv(n, 3)
        if pre: t.bump_k(n + 2)
        exps(2, 6)
        if not last: a(mf2b(nxt))
        if pre: t.ldkx(n + 2)
        exps(6, 13)
        a(mfpv(cur, 0))
        if not last: t.ldv(n + 1, 0)
        exps(13, 18)
        a(mfpv(cur, 1))
        if not last: t.ldv(n + 1, 1)
        exps(18, 22)
        if not last: a(mfqk(nxt, 0))
        if pre: t.ldk(n + 2, 0)
        exps(22, 26)
        a(mfpv(cur, 2))
        if not last: t.ldv(n + 1, 2)
        exps(26, 29)
        if not last: a(mfqk(nxt, 1))
        if pre: t.ldk(n + 2, 1)
        exps(29, 32)
        if n >= 30 and not last: a("s_nop 1")
    a("s_waitcnt lgkmcnt(0)")
    a("s_nop 0")
    a(mfpv(SB, 3))
    a(f"""
    s_mul_i32 s27, s26, 36864
    s_lshl_b32 s28, s22, 10
    s_add_u32 s28, s28, s27
    s_add_u32 s28, s28, {OF}
    s_lshr_b32 s29, s22, 2
    s_lshl_b32 s29, s29, 9
    s_and_b32 s30, s22, 3
    s_lshl_b32 s30, s30, 2
    s_add_u32 s29, s29, s30
    s_add_u32 s29, s29, s27
    s_add_u32 s29, s29, {OF+32768}
    s_mov_b32 s31, {fhex(2.0**64)}
    v_lshlrev_b32 v{AK}, 4, v1
    s_cbranch_vccnz K2_FIN
    v_cmp_nge_f32 vcc, s31, v{O+12}
    s_nop 4
    s_cbranch_vccnz K2_SLOW
    """)
    a.label("K2_FIN")
    a.stamp(6)
    a(f"""
    v_rcp_f32 v{T0}, v{O+12}
    s_nop 0
    v_mul_f32 v{T0}, v{T0}, v{G1}
    """)
    for i in range(10): a(f"v_mul_f32 v{O+i}, v{O+i}, v{T0}")
    for i in range(5): a(f"v_cvt_pk_bf16_f32 v{SA+i}, v{O+2*i}, v{O+2*i+1}")
    a(f"""
    buffer_store_dwordx4 {vr(SA,4)}, v{AK}, s[16:19], s28 offen {ST}
    s_mov_b64 exec, 0xffffffff
    buffer_store_dword v{SA+4}, v{AK}, s[16:19], s29 offen {ST}
    """)
    a.end()
    a.label("K2_SLOW")
    addr_init(a)
    a(f"v_mov_b32 v{QX+1}, 0")
    a(f"v_mov_b32 v{T0}, 0xff800000")
    a("s_mov_b32 s31, 8")
    a.label("K2_SLOWL")
    for m in range(4):
        a(f"ds_read_b32 v{KX}, v{AX} offset:{8192+256*m}")
        a(f"ds_read_b128 {vr(K0,4)}, v{AK} offset:{2048*m}")
        a(f"ds_read_b128 {vr(K1,4)}, v{AK} offset:{2048*m+1024}")
        a("s_waitcnt lgkmcnt(0)")
        a(mf2b(SA)); a("s_nop 15"); a("s_nop 1")
        a(mfqk(SA, 0)); a(mfqk(SA, 1)); a("s_nop 11")
        for i in range(0, 32, 2): a(f"v_max3_f32 v{T0}, v{T0}, v{SA+i}, v{SA+i+1}")
    a(f"""
    v_add_u32 v{AK}, {CH}, v{AK}
    v_add_u32 v{AX}, {CH}, v{AX}
    s_sub_u32 s31, s31, 1
    s_cmp_lg_u32 s31, 0
    s_cbranch_scc1 K2_SLOWL
    """)
    set_m(a, T0)
    a("s_branch K2_RERUN")

def gen_conv(a):
    ACC, AB, BB, VA, VB = 2, 68, 100, 132, 133
    a(f"""
    s_mul_i32 s26, s21, 72
    s_lshl_b32 s27, s24, 2
    s_add_u32 s26, s26, s27
    s_add_u32 s26, s26, s25            ; channel
    s_mul_i32 s27, s26, {KRP}
    s_add_u32 s27, s27, {KR}
    s_mul_i32 s28, s26, {UTP}
    s_add_u32 s28, s28, {UT}
    s_lshl_b32 s29, s26, 12
    s_add_u32 s29, s29, {AT}
    v_bfe_u32 v2, v1, 3, 1
    v_bfe_u32 v3, v1, 2, 1
    v_and_b32 v4, 3, v1
    v_lshl_add_u32 v3, v3, 2, v4       ; (t0-a)/2
    v_lshlrev_b32 v3, 2, v3            ; 2*(t0-a) bytes
    v_bfe_u32 v4, v1, 4, 1
    v_lshl_add_u32 v3, v4, 9, v3       ; + 512 p
    v_mul_u32_u24 v2, {KRC+4}, v2
    v_add_u32 v3, v3, v2
    v_lshrrev_b32 v5, 5, v1
    v_lshlrev_b32 v5, 4, v5            ; 16 h
    v_sub_u32 v{VA}, {KRC+4096-3552}, v3
    v_add_u32 v{VA}, v{VA}, v5
    v_and_b32 v6, 31, v1
    v_lshl_add_u32 v{VB}, v6, 5, v5
    v_add_u32 v{VB}, 32, v{VB}
    v_and_b32 v6, 15, v1
    v_lshl_add_u32 v134, v6, 5, v5
    v_lshl_add_u32 v134, v4, 11, v134
    v_cvt_f32_u32 v135, v4
    """)
    if CONVPRIO: a(f"s_setprio {CONVPRIO}")
    def loads(j):
        b = j % 2
        for i in range(4):
            a(f"buffer_load_dwordx4 {vr(AB+16*b+4*i,4)}, v{VA}, s[16:19], s27 offen offset:{3552-1024*i-32*j}")
            a(f"buffer_load_dwordx4 {vr(BB+16*b+4*i,4)}, v{VB}, s[16:19], s28 offen offset:{480+1024*i-32*j}")
    loads(0)
    for j in range(16):
        b = j % 2
        if j < 15:
            loads(j + 1); a("s_waitcnt vmcnt(8)")
        else: a("s_waitcnt vmcnt(0)")
        first = set()
        for (i, c) in ((0,0),(0,1),(1,0),(1,1),(0,2),(2,0),(1,2),(2,1),(0,3),(3,0)):
            s = i + c; D = vr(ACC + 16 * s, 16)
            cin = "0" if (j == 0 and s not in first) else D
            first.add(s)
            a(f"v_mfma_f32_32x32x16_bf16 {D}, {vr(AB+16*b+4*i,4)}, {vr(BB+16*b+4*c,4)}, {cin}")
    a("s_nop 11")
    a.stamp(6)
    Lr = lambda s, r: ACC + 16 * s + r
    Hr = lambda s, r: ACC + 16 * s + 8 + r
    for r in range(8): a(f"v_permlane16_swap_b32 v{Lr(0,r)}, v{Lr(2,r)}")
    for r in range(8): a(f"v_permlane16_swap_b32 v{Hr(0,r)}, v{Hr(2,r)}")
    for r in range(8): a(f"v_fmac_f32 v{Lr(0,r)}, v{Hr(1,r)}, v135")
    for r in range(8): a(f"v_permlane16_swap_b32 v{Lr(1,r)}, v{Lr(3,r)}")
    for r in range(8): a(f"v_permlane16_swap_b32 v{Hr(1,r)}, v{Hr(3,r)}")
    for r in range(8): a(f"v_add_f32 v{Lr(2,r)}, v{Lr(2,r)}, v{Hr(0,r)}")
    for r in range(8): a(f"v_add_f32 v{Lr(1,r)}, v{Lr(1,r)}, v{Hr(2,r)}")
    for r in range(8): a(f"v_add_f32 v{Lr(3,r)}, v{Lr(3,r)}, v{Hr(1,r)}")
    for k, s in enumerate((0, 2, 1, 3)):
        for i in range(4): a(f"v_cvt_pk_bf16_f32 v{AB+4*k+i}, v{Lr(s,i)}, v{Lr(s,4+i)}")
        a(f"buffer_store_dwordx4 {vr(AB+4*k,4)}, v134, s[16:19], s29 offen offset:{512*k} {ST}")
    a.end()

def gen_wo(a):
    a(f"""
    s_sub_u32 s26, s24, 18
    s_lshl_b32 s26, s26, 2
    s_add_u32 s26, s26, s25            ; ks
    s_cmp_ge_u32 s26, 36
    s_cbranch_scc1 K2_END
    s_mul_i32 s27, s26, 18
    s_sub_u32 s28, s26, 32
    s_mul_i32 s28, s28, 144
    s_add_u32 s28, s28, 16
    s_cmp_ge_u32 s26, 32
    s_cselect_b32 s27, s28, s27
    s_cselect_b32 s28, 18, 2           ; A
    s_cselect_b32 s29, 36, 8           ; B
    s_cselect_b32 s30, 72, 4
    s_mul_i32 s27, s27, 1152
    s_mul_i32 s28, s28, 1152
    s_mul_i32 s29, s29, 1152
    s_mul_i32 s30, s30, 1152
    s_mul_i32 s31, s21, 144
    s_add_u32 s40, s27, s31
    s_add_u32 s41, s40, 1152
    s_add_u32 s42, s40, s28
    s_add_u32 s43, s41, s28
    s_add_u32 s44, s40, s29
    s_add_u32 s45, s41, s29
    s_add_u32 s46, s42, s29
    s_add_u32 s47, s43, s29
    s_mul_i32 s31, s21, 36
    s_add_u32 s31, s31, s26
    s_mul_i32 s31, s31, 2304
    s_add_u32 s31, s31, {WOF}
    v_cmp_le_u32 vcc, 24, v1
    v_mov_b32 v3, 0
    s_nop 0
    v_addc_co_u32 v3, vcc, 0, v3, vcc  ; h
    v_mul_u32_u24 v4, 24, v3
    v_sub_u32 v4, v1, v4               ; row
    v_bfe_u32 v5, v4, 2, 1
    v_mul_u32_u24 v5, 12, v5
    v_lshrrev_b32 v6, 3, v4
    v_lshl_add_u32 v5, v6, 2, v5
    v_and_b32 v6, 3, v4
    v_add_u32 v5, v5, v6
    v_mul_lo_u32 v3, v3, s30
    v_lshl_add_u32 v3, v5, 1, v3
    v_lshlrev_b32 v4, 4, v1
    s_mov_b32 exec_hi, 0xffff
    """)
    for t in range(3):
        for e in range(8): a(f"buffer_load_ushort v{8+8*t+e}, v3, s[12:15], s{40+e} offen offset:{48*t}")
    for t in range(3):
        a(f"s_waitcnt vmcnt({8*(2-t)+t})")
        for i in range(4): a(f"v_lshl_or_b32 v{32+4*t+i}, v{8+8*t+2*i+1}, 16, v{8+8*t+2*i}")
        a(f"buffer_store_dwordx4 {vr(32+4*t,4)}, v4, s[16:19], s31 offen offset:{768*t} {ST}")
    a.end()

def gen_k2(a):
    a.label("k2_kernel")
    a(f"""
    s_cmp_ge_u32 s2, 256
    s_cbranch_scc1 K2_END
    """)
    a.begin()
    a(f"""
    s_load_dwordx2 s[16:17], s[0:1], 120
    s_load_dwordx2 s[12:13], s[0:1], 88
    v_lshrrev_b32 v2, 6, v0
    v_and_b32 v1, 63, v0
    s_mov_b32 s18, {WSEND}
    s_mov_b32 s19, 0x00020000
    v_readfirstlane_b32 s20, v2
    s_mov_b32 s14, 663552
    s_mov_b32 s15, 0x00020000
    s_and_b32 s21, s2, 7               ; xcd
    s_lshr_b32 s24, s2, 3              ; i
    s_and_b32 s22, s24, 3
    s_lshl_b32 s23, s21, 2
    s_add_u32 s22, s22, s23            ; head
    s_lshr_b32 s23, s24, 2             ; qb
    s_cmp_ge_u32 s20, 8
    s_cbranch_scc1 K2_AUX
    """)
    gen_att(a)
    a.label("K2_AUX")
    a(f"""
    s_sub_u32 s25, s20, 8              ; a
    s_mul_i32 s26, s22, {KVH}
    s_add_u32 s26, s26, {KV}
    s_lshl_b32 s27, s25, 11
    s_add_u32 s32, s26, s27
    s_lshl_b32 s28, s25, 8
    s_add_u32 s33, s26, s28
    s_add_u32 s33, s33, 16384
    s_lshr_b32 s29, s22, 1
    s_lshl_b32 s29, s29, 14
    s_and_b32 s30, s22, 1
    s_lshl_b32 s30, s30, 2
    s_add_u32 s29, s29, s30
    s_lshl_b32 s30, s25, 9
    s_add_u32 s29, s29, s30
    s_add_u32 s34, s29, {KXP}
    s_mov_b32 s35, s23
    v_lshlrev_b32 v2, 4, v1
    v_lshlrev_b32 v3, 2, v1
    v_lshlrev_b32 v4, 3, v1
    s_waitcnt lgkmcnt(0)
    """)
    vm = VM()
    for p in range(8):
        a(f"""
        s_mul_i32 s36, s35, {KVC}
        s_add_u32 s37, s36, s32
        s_add_u32 m0, s27, {p*CH}
        s_lshl_b32 s39, s35, 11
        buffer_load_dwordx4 v2, s[16:19], s37 offen lds
        buffer_load_dwordx4 v2, s[16:19], s37 offen offset:1024 lds
        s_add_u32 m0, s28, {p*CH+8192}
        s_add_u32 s39, s39, s34
        buffer_load_dword v4, s[16:19], s39 offen lds
        s_add_u32 m0, s27, {p*CH+9216}
        s_add_u32 s37, s37, 8192
        buffer_load_dwordx4 v2, s[16:19], s37 offen lds
        buffer_load_dwordx4 v2, s[16:19], s37 offen offset:1024 lds
        s_add_u32 m0, s28, {p*CH+17408}
        s_add_u32 s38, s36, s33
        buffer_load_dword v3, s[16:19], s38 offen lds
        s_add_u32 s35, s35, 1
        s_and_b32 s35, s35, 7
        """)
        for _ in range(6): vm.issue(p)
    a.stamp(1)
    a(vm.wait(0)); a.stamp(2); a("s_barrier")
    a(vm.wait(2)); a.stamp(3); a("s_barrier")
    a(vm.wait(7)); a.stamp(4); a("s_barrier")
    a.stamp(5)
    a("s_cmp_ge_u32 s24, 18")
    a("s_cbranch_scc1 K2_WO")
    gen_conv(a)
    a.label("K2_WO")
    gen_wo(a)
    a.label("K2_END")
    a("s_endpgm")
```

```python
from asmlib import *
from layout import *
from k1 import ST
BLOCK = 576
LDS = 163840
NV = 96
WOB, ATB, OB = 0, 82944, 92160
OST = ""
def gen_k3(a):
    a.label("k3_kernel")
    a(f"""
    s_cmp_ge_u32 s2, 256
    s_cbranch_scc1 K3_END
    """)
    a.begin()
    a(f"""
    s_load_dwordx2 s[16:17], s[0:1], 120
    s_load_dwordx2 s[12:13], s[0:1], 104
    v_lshrrev_b32 v2, 6, v0
    v_and_b32 v1, 63, v0
    s_mov_b32 s18, {WSEND}
    s_mov_b32 s19, 0x00020000
    v_readfirstlane_b32 s20, v2
    s_mov_b32 s14, 2359296
    s_mov_b32 s15, 0x00020000
    s_and_b32 s21, s2, 7
    s_lshr_b32 s24, s2, 3
    s_and_b32 s22, s24, 7              ; dg
    s_lshr_b32 s25, s24, 3
    s_lshl_b32 s23, s21, 2
    s_add_u32 s23, s23, s25            ; tb
    s_lshl_b32 s25, s25, 1
    s_add_u32 s25, s25, s22
    s_cmp_ge_u32 s25, 9
    s_cselect_b32 s26, 9, 0
    s_sub_u32 s25, s25, s26
    s_and_b32 s26, s20, 1              ; ti
    s_lshr_b32 s27, s20, 1
    s_mul_i32 s28, s22, {36*2304}
    s_lshl_b32 s29, s20, 10
    s_add_u32 s28, s28, s29
    s_add_u32 s28, s28, {WOF}
    s_lshl_b32 s30, s23, 1
    s_add_u32 s30, s30, s26            ; tt
    s_mul_i32 s31, s30, 36864
    s_add_u32 s31, s31, {OF}
    s_lshl_b32 s32, s27, 10
    s_add_u32 s32, s32, s31
    s_mov_b32 s33, 4096
    s_add_u32 s34, s29, {OB}
    s_mov_b32 s35, 8192
    s_mov_b32 s36, s25
    v_lshlrev_b32 v2, 4, v1
    v_mov_b32 v3, v2
    s_cmp_lg_u32 s20, 8
    s_cbranch_scc1 K3_N8
    s_mul_i32 s32, s22, {72*4096}
    s_lshl_b32 s33, s23, 7
    s_add_u32 s32, s32, s33
    s_add_u32 s32, s32, {AT}
    s_mov_b32 s33, 32768
    s_mov_b32 s34, {ATB}
    s_mov_b32 s35, 1024
    s_mov_b32 s36, 0
    v_lshrrev_b32 v4, 3, v1
    v_and_b32 v5, 7, v1
    v_xor_b32 v5, v5, v4
    v_lshlrev_b32 v5, 4, v5
    v_lshl_add_u32 v3, v4, 12, v5
    """)
    a.label("K3_N8")
    a(f"""
    s_add_u32 s37, s25, 8
    s_cmp_ge_u32 s37, 9
    s_cselect_b32 s38, 9, 0
    s_sub_u32 s37, s37, s38
    s_lshl_b32 s37, s37, 12
    s_add_u32 s37, s37, s31
    s_lshl_b32 s38, s30, 8
    s_add_u32 s38, s38, {GG}
    v_and_b32 v6, 31, v1
    v_lshlrev_b32 v7, 3, v6
    s_waitcnt lgkmcnt(0)
    buffer_load_dword v8, v7, s[16:19], s38 offen
    buffer_load_dwordx4 v[12:15], v2, s[16:19], s37 offen offset:3072
    """)
    for p in range(9):
        a(f"""
        s_mul_i32 s39, s25, 9216
        s_add_u32 s39, s39, s28
        s_add_u32 m0, s29, {WOB+9216*p}
        s_mul_i32 s40, s36, s33
        buffer_load_dwordx4 v2, s[16:19], s39 offen lds
        s_mov_b32 m0, s34
        s_add_u32 s40, s40, s32
        """)
        if p == 8:
            a("s_cmp_eq_u32 s27, 3"); a("s_cbranch_scc1 K3_SK")
        a("buffer_load_dwordx4 v3, s[16:19], s40 offen lds")
        if p == 8: a.label("K3_SK")
        else:
            a("""
            s_add_u32 s34, s34, s35
            s_add_u32 s25, s25, 1
            s_cmp_eq_u32 s25, 9
            s_cselect_b32 s25, 0, s25
            s_add_u32 s36, s36, 1
            s_cmp_eq_u32 s36, 9
            s_cselect_b32 s36, 0, s36
            """)
    a.stamp(1)
    a("s_cmp_ge_u32 s20, 6")
    a("s_cbranch_scc1 K3_IDLE")
    a(f"""
    v_lshrrev_b32 v9, 5, v1            ; h
    v_subrev_u32 v10, 24, v6
    v_min_u32 v10, v10, v6             ; m' = m>=24 ? m-24 : m
    v_mul_u32_u24 v16, 384, v9
    v_lshl_add_u32 v16, v10, 4, v16
    s_mul_i32 s39, s27, 768
    v_add_u32 v16, s39, v16
    v_add_u32 v17, {18*2304}, v16
    s_lshl_b32 s39, s26, 10
    s_add_u32 s39, s39, {OB}
    v_add_u32 v18, s39, v2
    v_add_u32 v19, {18*2048}, v18
    v_bfe_u32 v20, v10, 2, 1
    v_mul_u32_u24 v20, 12, v20
    v_lshrrev_b32 v21, 3, v10
    v_lshl_add_u32 v20, v21, 2, v20
    v_and_b32 v21, 3, v10
    v_add_u32 v20, v20, v21
    s_mul_i32 s39, s27, 24
    v_add_u32 v20, s39, v20
    s_lshl_b32 s39, s26, 2
    v_add_u32 v21, s39, v9
    v_and_b32 v22, 7, v20
    v_xor_b32 v21, v21, v22
    v_lshlrev_b32 v20, 7, v20
    v_add_u32 v20, {ATB}, v20
    v_lshl_add_u32 v22, v21, 4, v20
    v_xor_b32 v21, 2, v21
    v_lshl_add_u32 v23, v21, 4, v20
    v_mul_u32_u24 v24, 1152, v6
    v_mul_u32_u24 v25, 24, v9
    v_add_u32 v24, v24, v25
    s_mul_i32 s41, s30, {32*1152}
    s_mul_i32 s39, s22, 144
    s_add_u32 s41, s41, s39
    s_mul_i32 s39, s27, 48
    s_add_u32 s41, s41, s39
    v_bfe_u32 v25, v6, 3, 1
    v_xor_b32 v25, v25, v9
    v_lshlrev_b32 v25, 3, v25
    v_lshrrev_b32 v26, 4, v6
    v_lshl_add_u32 v25, v26, 2, v25
    v_bfe_u32 v26, v6, 1, 2
    v_add_u32 v25, v25, v26            ; idx
    v_and_b32 v26, 1, v6
    v_lshlrev_b32 v26, 4, v26
    v_sub_u32 v26, 16, v26
    s_waitcnt vmcnt(18)
    v_lshrrev_b32 v8, v26, v8
    """)
    for r in range(8):
        a(f"v_cmp_eq_u32 vcc, {r}, v25"); a("s_nop 1"); a(f"v_cndmask_b32 v{32+r}, 0, v8, vcc")
    ACC, FA, FB = 40, 56, 72
    def waitn(p): return max(0, 2 * (8 - p) - 1)
    for p in range(9):
        a(f"s_waitcnt vmcnt({waitn(p)})"); a("s_barrier")
        if p in (0, 4, 8): a.stamp(2 + p // 4)
        n = 0
        for k in range(4):
            pos = 4 * p + k
            a(f"ds_read_b128 {vr(FA+4*k,4)}, v{16+pos//18} offset:{(pos%18)*2304}")
            if pos < 35: a(f"ds_read_b128 {vr(FB+4*k,4)}, v{18+pos//18} offset:{(pos%18)*2048}")
        if p == 8:
            a(f"ds_read_b128 v[88:91], v22"); a(f"ds_read_b128 v[92:95], v23")
        for k in range(4):
            pos = 4 * p + k
            left = 2 * (3 - k) if p < 8 else (2 * (3 - k) + 1 if k < 3 else 2)
            a(f"s_waitcnt lgkmcnt({left})")
            B = vr(FB + 4 * k, 4) if pos < 35 else "v[12:15]"
            a(f"v_mfma_f32_32x32x16_bf16 {vr(ACC,16)}, {vr(FA+4*k,4)}, {B}, {'0' if pos == 0 else vr(ACC,16)}")
    a("s_waitcnt lgkmcnt(0)")
    a(f"v_mfma_f32_32x32x16_bf16 {vr(ACC,16)}, v[88:91], v[32:35], {vr(ACC,16)}")
    a(f"v_mfma_f32_32x32x16_bf16 {vr(ACC,16)}, v[92:95], v[36:39], {vr(ACC,16)}")
    a("s_nop 11")
    a.stamp(5)
    for i in range(6): a(f"v_cvt_pk_bf16_f32 v{FA+i}, v{ACC+2*i}, v{ACC+2*i+1}")
    a(f"buffer_store_dwordx4 {vr(FA,4)}, v24, s[12:15], s41 offen {OST}")
    a(f"buffer_store_dwordx2 {vr(FA+4,2)}, v24, s[12:15], s41 offen offset:16 {OST}")
    a.stamp(6)
    a.end()
    a.label("K3_IDLE")
    for p in range(9):
        a(f"s_waitcnt vmcnt({waitn(p)})"); a("s_barrier")
    a.end()
    a.label("K3_END")
    a("s_endpgm")
```

```python
import gen, k1, k2, k3
from asmlib import *
def empty(a):
    a.label("e_kernel"); a("s_endpgm")
K = [("k1_kernel", k1.gen_k1, 256, 512, 157184, 168), ("k2_kernel", k2.gen_k2, 256, k2.BLOCK, k2.LDS, k2.NV), ("k3_kernel", k3.gen_k3, 256, k3.BLOCK, k3.LDS, k3.NV)]
E = ("e_kernel", empty, 256, 64, 0, 8)
gen.build(K, "vA.s")
gen.build(K + [E, E], "vB.s")
gen.build([E, E] + K, "vC.s")
gen.build(K + [K[2]], "vD.s")
gen.build([K[0]] + K, "vE.s")
```

```python
import sys, os, struct, subprocess, ctypes
sys.path.insert(0, "cdna_kernels")
import numpy as np
import cdna_launch as cl
T = """
.amdgcn_target "amdgcn-amd-amdhsa--gfx950"
.text
.globl mm_kernel
.p2align 8
.type mm_kernel,@function
mm_kernel:
    s_memtime s[40:41]
    s_memrealtime s[44:45]
    s_load_dwordx2 s[4:5], s[0:1], 0
    s_load_dwordx2 s[6:7], s[0:1], 8
    s_load_dwordx2 s[16:17], s[0:1], 16
    s_waitcnt lgkmcnt(0)
    s_mov_b32 s8, s4
    s_mov_b32 s9, s5
    s_mov_b32 s10, 2359296
    s_mov_b32 s11, 0x00020000
    s_mov_b32 s12, s6
    s_mov_b32 s13, s7
    s_mov_b32 s14, 1990656
    s_mov_b32 s15, 0x00020000
    s_mov_b32 s18, {outbytes}
    s_mov_b32 s19, 0x00020000
    v_lshrrev_b32 v1, 6, v0
    v_and_b32 v2, 63, v0
    s_nop 1
    v_readfirstlane_b32 s20, v1
    ; head = 4*(b%8) + (b/8)%4 ; qb = b/32
    s_and_b32 s21, s2, 7
    s_lshl_b32 s21, s21, 2
    s_lshr_b32 s22, s2, 3
    s_and_b32 s22, s22, 3
    s_add_u32 s21, s21, s22         ; head
    s_lshr_b32 s22, s2, 5           ; qb
{body}
    s_waitcnt vmcnt(0) lgkmcnt(0)
    s_memtime s[42:43]
    s_memrealtime s[46:47]
    s_waitcnt lgkmcnt(0)
    s_mul_i32 s30, s2, 16
    s_add_u32 s30, s30, s20
    s_lshl_b32 s30, s30, 4
    v_mov_b32 v1, s30
    v_mov_b32 v4, s40
    v_mov_b32 v5, s42
    v_mov_b32 v6, s44
    v_mov_b32 v7, s46
    s_nop 4
    buffer_store_dwordx4 v[4:7], v1, s[16:19], 0 offen
    s_waitcnt vmcnt(0)
    s_endpgm
.section .rodata,"a"
.p2align 6
.amdhsa_kernel mm_kernel
  .amdhsa_next_free_vgpr 256
  .amdhsa_next_free_sgpr 102
  .amdhsa_accum_offset 256
  .amdhsa_group_segment_fixed_size 0
  .amdhsa_kernarg_size 24
  .amdhsa_user_sgpr_count 2
  .amdhsa_user_sgpr_kernarg_segment_ptr 1
  .amdhsa_system_sgpr_workgroup_id_x 1
.end_amdhsa_kernel
.amdgpu_metadata
---
amdhsa.version: [1, 2]
amdhsa.kernels:
  - .name: mm_kernel
    .symbol: mm_kernel.kd
    .kernarg_segment_size: 24
    .kernarg_segment_align: 8
    .group_segment_fixed_size: 0
    .private_segment_fixed_size: 0
    .wavefront_size: 64
    .sgpr_count: 102
    .vgpr_count: 256
    .max_flat_workgroup_size: 1024
    .args:
      - {{.name: kernargs, .size: 24, .offset: 0, .value_kind: by_value}}
...
.end_amdgpu_metadata
"""
ON = os.path.exists("/dev/kfd")
if ON:
    X = cl.DeviceBuffer.from_numpy(np.random.randint(0,60000,2048*576).astype(np.uint16))
    Wb = cl.DeviceBuffer.from_numpy(np.random.randint(0,60000,576*1728).astype(np.uint16))
    BIG = cl.DeviceBuffer(1<<30)
def run(name, body, nw=8, grid=256, lds=160*1024):
    src = T.format(outbytes=grid*16*16, body=body)
    os.makedirs("mbout", exist_ok=True)
    s = f"mbout/{name}.s"; co = f"mbout/{name}.co"
    open(s, "w").write(src)
    r = subprocess.run(["clang", "-x", "assembler", "-target", "amdgcn-amd-amdhsa", "-mcpu=gfx950", s, "-o", co], capture_output=True, text=True)
    if r.returncode != 0:
        print(r.stderr); raise SystemExit(1)
    if not ON:
        print(name, "assembled"); return
    k = cl.AsmKernel(co, "mm_kernel", check=True)
    buf = cl.DeviceBuffer.from_numpy(np.zeros(grid*64, np.uint32))
    ka = struct.pack("<QQQ", X.ptr, Wb.ptr, buf.ptr)
    res=[]
    for mode in ("warm","cold"):
        rr=[]
        for rep in range(5):
            if mode=="cold":
                cl._hip.hipMemsetAsync(BIG._ptr, rep, 1<<30, None)
            else:
                k.launch((grid,1,1), (64*nw,1,1), ka, shared_mem=lds)
            k.launch((grid,1,1), (64*nw,1,1), ka, shared_mem=lds)
            cl._hip.hipDeviceSynchronize()
            out = buf.to_numpy(np.uint32, (grid,16,4))[:, :nw].astype(np.int64)
            cyc = (out[:,:,1].max(1) - out[:,:,0].min(1))
            rt = (out[:,:,3].max() - out[:,:,2].min())*10
            st = (out[:,:,2].max() - out[:,:,2].min())*10
            rr.append((np.median(cyc), cyc.max(), rt, st))
        rr = np.array(rr)
        res.append(f"{mode}: med {np.median(rr[1:,0]):7.0f} max {np.median(rr[1:,1]):7.0f} cyc, span {np.median(rr[1:,2]):6.0f} ns startskew {np.median(rr[1:,3]):5.0f}")
    print(f"{name:24s} " + " | ".join(res), flush=True)
    k.unload()
```

```python
import os, struct, subprocess, numpy as np
import mem1_lib as m
import cdna_launch as cl
def run(name, bg, fg):
    body = f"""
    v_lshlrev_b32 v3, 4, v2
    v_lshlrev_b32 v4, 2, v2
    s_lshl_b32 s23, s20, 13
    v_add_u32 v4, 0x18000, v4
    v_add_u32 v4, s23, v4
    s_barrier
    s_cmp_ge_u32 s20, 4
    s_cbranch_scc1 L_fg
{bg}
    s_branch L_out
L_fg:
    s_mov_b32 s21, 30
L_w:
    s_sub_u32 s21, s21, 1
    s_cmp_lg_u32 s21, 0
    s_cbranch_scc1 L_w
    s_memtime s[40:41]
    s_waitcnt lgkmcnt(0)
{fg}
L_out:
"""
    src = m.T.format(outbytes=256*16*16, body=body)
    os.makedirs("mbout", exist_ok=True)
    s = f"ll.s"; co = f"ll.co"
    open(s, "w").write(src)
    r = subprocess.run(["clang", "-x", "assembler", "-target", "amdgcn-amd-amdhsa", "-mcpu=gfx950", s, "-o", co], capture_output=True, text=True)
    assert r.returncode == 0, r.stderr
    if not m.ON: print("ok"); return
    k = cl.AsmKernel(co, "mm_kernel", check=True)
    buf = cl.DeviceBuffer.from_numpy(np.zeros(256*64, np.uint32))
    ka = struct.pack("<QQQ", m.X.ptr, m.Wb.ptr, buf.ptr)
    for rep in range(4):
        k.launch((256,1,1), (512,1,1), ka, shared_mem=160*1024)
        cl._hip.hipDeviceSynchronize()
    o = buf.to_numpy(np.uint32, (256,16,4))[:, :8].astype(np.int64)
    d = o[:,:,1]-o[:,:,0]
    print(f"{name:34s} bg {np.median(d[:,:4]):7.0f}  fg {np.median(d[:,4:]):7.0f}", flush=True)
    k.unload()
dma = "    s_lshl_b32 s25, s20, 14\n    s_lshl_b32 s26, s20, 16\n" + "\n".join(f"    s_add_u32 m0, s25, {1024*(i%16)}\n    s_add_u32 s26, s26, 1024\n    buffer_load_dwordx4 v3, s[8:11], s26 offen lds" for i in range(60))
vld = "    s_lshl_b32 s26, s20, 16\n" + "\n".join(f"    s_add_u32 s26, s26, 1024\n    buffer_load_dwordx4 v[{16+4*(i%40)}:{19+4*(i%40)}], v3, s[8:11], s26 offen" for i in range(60))
rd = "\n".join(f"    ds_read_b128 v[{16+4*(i%16)}:{19+4*(i%16)}], v3 offset:{1024*(i%32)}" for i in range(250))
none = "    s_nop 0"
fgs = {
 "wr_lat x10": "\n".join("    ds_write_b32 v4, v2\n    s_waitcnt lgkmcnt(0)" for i in range(10)),
 "wr1lane_lat x10": "    s_mov_b64 exec, 1\n" + "\n".join("    ds_write_b32 v4, v2\n    s_waitcnt lgkmcnt(0)" for i in range(10)) + "\n    s_mov_b64 exec, -1",
 "rd_lat x10": "\n".join("    ds_read_b32 v5, v4\n    s_waitcnt lgkmcnt(0)" for i in range(10)),
 "wr_stream x40(+5valu)": "\n".join(f"    v_max_f32 v6, v7, v8\n    v_max_f32 v6, v7, v8\n    v_max_f32 v6, v7, v8\n    v_max_f32 v6, v7, v8\n    v_max_f32 v6, v7, v8\n    ds_write_b32 v4, v2 offset:{256*(i%16)}" for i in range(40)),
 "wr64_stream x20(+10valu)": "    v_lshlrev_b32 v9, 1, v4\n    v_and_b32 v9, 0x1ffff, v9\n" + "\n".join("\n".join("    v_max_f32 v6, v7, v8" for _ in range(10)) + f"\n    ds_write_b64 v9, v[2:3] offset:{512*(i%8)}" for i in range(20)),
 "rd128_stream x40": "\n".join(f"    ds_read_b128 v[{16+4*(i%16)}:{19+4*(i%16)}], v3 offset:{1024*(i%32)}" for i in range(40)),
}
for fn, fg in fgs.items():
    for bn, bg in (("none", none), ("dma", dma), ("vload", vld), ("dsread", rd)):
        run(f"{fn} | {bn}", bg, fg)
```

```python
import sys, os, struct, subprocess
sys.path.insert(0, "cdna_kernels")
import numpy as np
import cdna_launch as cl
T = """
.amdgcn_target "amdgcn-amd-amdhsa--gfx950"
.text
.globl mb_kernel
.p2align 8
.type mb_kernel,@function
mb_kernel:
    s_load_dwordx2 s[8:9], s[0:1], 0
    s_load_dwordx2 s[24:25], s[0:1], 8
    s_waitcnt lgkmcnt(0)
    s_mov_b32 s10, {outbytes}
    s_mov_b32 s11, 0x00020000
    s_mov_b32 s26, 0x100000
    s_mov_b32 s27, 0x00020000
    v_lshrrev_b32 v1, 6, v0
    s_nop 1
    v_readfirstlane_b32 s20, v1
    v_and_b32 v1, 63, v0
    v_lshlrev_b32 v126, 4, v1
    s_mov_b32 s21, 0
L_fill:
    s_mov_b32 m0, s21
    s_nop 0
    buffer_load_dwordx4 v126, s[24:27], s21 offen lds
    s_add_u32 s21, s21, 1024
    s_cmp_lt_u32 s21, 32768
    s_cbranch_scc1 L_fill
    s_waitcnt vmcnt(0)
    s_barrier
{init}
    s_waitcnt vmcnt(0) lgkmcnt(0)
    s_mov_b32 s12, {iters}
    s_barrier
    s_memtime s[14:15]
    s_memrealtime s[30:31]
    s_waitcnt lgkmcnt(0)
.p2align 6
L_loop:
{body}
    s_sub_u32 s12, s12, 1
    s_cmp_lg_u32 s12, 0
    s_cbranch_scc1 L_loop
    s_waitcnt lgkmcnt(0)
    s_memtime s[16:17]
    s_memrealtime s[32:33]
    s_waitcnt lgkmcnt(0)
    s_mul_i32 s18, s2, 16
    s_add_u32 s18, s18, s20
    s_lshl_b32 s18, s18, 4
    s_nop 15
    s_nop 15
    v_mov_b32 v1, s18
    v_mov_b32 v4, s14
    v_mov_b32 v5, s16
    v_mov_b32 v6, s30
    v_mov_b32 v7, s32
    s_nop 4
    buffer_store_dwordx4 v[4:7], v1, s[8:11], 0 offen
    s_waitcnt vmcnt(0)
    s_endpgm
.section .rodata,"a"
.p2align 6
.amdhsa_kernel mb_kernel
  .amdhsa_next_free_vgpr {nvgpr}
  .amdhsa_next_free_sgpr 102
  .amdhsa_accum_offset {nvgpr}
  .amdhsa_group_segment_fixed_size 0
  .amdhsa_kernarg_size 16
  .amdhsa_user_sgpr_count 2
  .amdhsa_user_sgpr_kernarg_segment_ptr 1
  .amdhsa_system_sgpr_workgroup_id_x 1
.end_amdhsa_kernel
.amdgpu_metadata
---
amdhsa.version: [1, 2]
amdhsa.kernels:
  - .name: mb_kernel
    .symbol: mb_kernel.kd
    .kernarg_segment_size: 16
    .kernarg_segment_align: 8
    .group_segment_fixed_size: 0
    .private_segment_fixed_size: 0
    .wavefront_size: 64
    .sgpr_count: 102
    .vgpr_count: {nvgpr}
    .max_flat_workgroup_size: 1024
    .args:
      - {{.name: kernargs, .size: 16, .offset: 0, .value_kind: by_value}}
...
.end_amdgpu_metadata
"""
ON = os.path.exists("/dev/kfd")
def f2bf(x):
    u = np.asarray(x, np.float32).view(np.uint32)
    return ((u + 0x7fff + ((u>>16)&1)) >> 16).astype(np.uint16)
if ON: BIG = cl.DeviceBuffer(1<<28)
def run(name, body, init, data, iters=8, w=2, per=1, nvgpr=128, grid=256):
    src = T.format(outbytes=grid*16*16, init=init, iters=iters, body=body, nvgpr=nvgpr)
    os.makedirs("mbout", exist_ok=True)
    s = f"mbout/{name}.s"; co = f"mbout/{name}.co"
    open(s, "w").write(src)
    r = subprocess.run(["clang", "-x", "assembler", "-target", "amdgcn-amd-amdhsa", "-mcpu=gfx950", s, "-o", co], capture_output=True, text=True)
    if r.returncode != 0:
        print(r.stderr); raise SystemExit(1)
    if not ON: print(name, "ok"); return
    k = cl.AsmKernel(co, "mb_kernel", check=True)
    buf = cl.DeviceBuffer.from_numpy(np.zeros(grid*64, np.uint32))
    d = np.zeros(1<<19, np.uint16); d[:data.size] = data.reshape(-1)
    db = cl.DeviceBuffer.from_numpy(d)
    R=[]
    for rep in range(7):
        cl._hip.hipMemsetAsync(BIG._ptr, rep, 1<<28, None)
        k.launch((grid,1,1), (256*w,1,1), struct.pack("<QQ", buf.ptr, db.ptr), shared_mem=160*1024)
        cl._hip.hipDeviceSynchronize()
        o = buf.to_numpy(np.uint32, (grid,16,4))[:, :4*w].astype(np.int64)
        cyc = np.median(o[:,:,1].max(1)-o[:,:,0].min(1)); ns = np.median(o[:,:,3].max(1)-o[:,:,2].min(1))*10
        R.append((cyc, ns))
    c, n = np.median(np.array(R[1:]), axis=0)
    u = iters*per*w
    print(f"{name:34s} w{w} cyc {c:8.0f} ns {n:7.0f} clk {c/n:5.2f} GHz | per unit {c/u:7.1f} cyc {n/u:6.1f} ns", flush=True)
    k.unload()
```

```python
import numpy as np
from pw import run, f2bf
rng = np.random.default_rng(0)
D = f2bf(rng.standard_normal(32*512).astype(np.float32))
def r(b,n): return f"v[{b}:{b+n-1}]"
init = "\n".join(f"    v_mov_b32 v{i}, 0" for i in range(2,160) if i != 126) + """
    v_lshlrev_b32 v2, 4, v1
    v_lshlrev_b32 v3, 3, v1
"""
F=32; ACC=96
def g32():
    L=[]
    for ks in range(4):
        n=(ks+2)%4
        rd=[f"ds_read_b128 {r(F+16*n,4)}, v2 offset:{4096*n}", f"ds_read_b64_tr_b16 {r(F+16*n+8,2)}, v3 offset:{4096*n+2048}", f"ds_read_b64_tr_b16 {r(F+16*n+10,2)}, v3 offset:{4096*n+2560}",
            f"ds_read_b128 {r(F+16*n+4,4)}, v2 offset:{4096*n+1024}", f"ds_read_b64_tr_b16 {r(F+16*n+12,2)}, v3 offset:{4096*n+3072}", f"ds_read_b64_tr_b16 {r(F+16*n+14,2)}, v3 offset:{4096*n+3584}"]
        L.append("s_waitcnt lgkmcnt(6)")
        for m in range(4):
            ci,ti=divmod(m,2)
            L.append(f"v_mfma_f32_32x32x16_bf16 {r(ACC+16*m,16)}, {r(F+16*ks+8+4*ci,4)}, {r(F+16*ks+4*ti,4)}, {r(ACC+16*m,16)}")
            L += rd[2*m:2*m+2]
    return L
def g16():
    L=[]
    for ks in range(2):
        n=1-ks
        rd=[]
        for t in range(4):
            rd += [f"ds_read_b128 {r(F+32*n+4*t,4)}, v2 offset:{8192*n+1024*t}", f"ds_read_b64_tr_b16 {r(F+32*n+16+4*t,2)}, v3 offset:{8192*n+4096+1024*t}", f"ds_read_b64_tr_b16 {r(F+32*n+18+4*t,2)}, v3 offset:{8192*n+4608+1024*t}"]
        L.append("s_waitcnt lgkmcnt(0)")
        for m in range(16):
            ci,ti=divmod(m,4)
            L.append(f"v_mfma_f32_16x16x32_bf16 {r(ACC+4*m,4)}, {r(F+32*ks+16+4*ci,4)}, {r(F+32*ks+4*ti,4)}, {r(ACC+4*m,4)}")
            L += rd[m:m+1]
    return L
for nm,g in (("g32",g32),("g16",g16)):
    body="\n".join("    "+x for x in g()*3)
    run(nm, body, init, D, iters=4, w=1, per=3, nvgpr=168)
    run(nm+"_long", body, init, D, iters=16, w=1, per=3, nvgpr=168)
```
